```python
import torch

def _softmax(x, axis=-1):
    return torch.softmax(x, dim=axis)
def _gelu(x):
    return torch.nn.functional.gelu(x, approximate="tanh")
def _silu(x):
    return torch.nn.functional.silu(x)
def _sigmoid(x):
    return torch.sigmoid(x)
def _layernorm(x, axis=-1, eps=1e-5):
    m = x.mean(dim=axis, keepdim=True)
    v = x.var(dim=axis, keepdim=True, unbiased=False)
    return (x - m) / torch.sqrt(v + eps)
def _scatter_add(tgt, idx, src, axis=0):
    return tgt.clone().index_add_(axis, idx, src)
def _segment_sum(src, seg, n):
    out = torch.zeros((n,) + src.shape[1:], dtype=src.dtype)
    return out.index_add_(0, seg, src)
def _pad(x, pw):
    flat = tuple(v for pair in reversed(pw) for v in pair)
    return torch.nn.functional.pad(x, flat)

kernel_name = 'concat_heads__gqa_block_cached__mha_block_cached__near_ridge'

def setup_inputs():

    _w = (lambda a: (lambda t: t.to(torch.bfloat16) if t.is_floating_point() else t)(torch.as_tensor(a)))
    def _A_setup():
        B, Sq, D = 16, 48, 512
        Hq, Hkv, Sk, Dh = 32, 8, 1024, 128
        assert Hq % Hkv == 0, (Hq, Hkv)
        return {
            "x": _w((lambda *s: torch.randn(*s, dtype=torch.bfloat16) * 0.8)(B, Sq, D)),
            "k_cache": _w((lambda *s: torch.randn(*s, dtype=torch.bfloat16) * 0.8)(B, Hkv, Sk, Dh)),
            "v_cache": _w((lambda *s: torch.randn(*s, dtype=torch.bfloat16) * 0.05)(B, Hkv, Sk, Dh)),
            "wq": _w((lambda *s: torch.randn(*s, dtype=torch.bfloat16) * 0.8)(D, Hq * Dh) * (D ** -0.5)),
            "wo": _w((lambda *s: torch.randn(*s, dtype=torch.bfloat16) * 0.05)(Hq * Dh, D) * ((Hq * Dh) ** -0.5)),
        }
    _A_in = _A_setup()

    def _B_setup():
        B, Sq, D = 16, 48, 512
        H, Sk, Dh = 32, 1024, 128
        return {
            "x": _w((lambda *s: torch.randn(*s, dtype=torch.bfloat16) * 0.8)(B, Sq, D)),
            "k_cache": _w((lambda *s: torch.randn(*s, dtype=torch.bfloat16) * 0.8)(B, H, Sk, Dh)),
            "v_cache": _w((lambda *s: torch.randn(*s, dtype=torch.bfloat16) * 0.05)(B, H, Sk, Dh)),
            "wq": _w((lambda *s: torch.randn(*s, dtype=torch.bfloat16) * 0.8)(D, H * Dh) * (D ** -0.5)),
            "wo": _w((lambda *s: torch.randn(*s, dtype=torch.bfloat16) * 0.05)(H * Dh, D) * ((H * Dh) ** -0.5)),
        }
    _B_in = _B_setup()

    return {
        "A_x": _A_in["x"],
        "A_k_cache": _A_in["k_cache"],
        "A_v_cache": _A_in["v_cache"],
        "A_wq": _A_in["wq"],
        "A_wo": _A_in["wo"],
        "B_x": _B_in["x"],
        "B_k_cache": _B_in["k_cache"],
        "B_v_cache": _B_in["v_cache"],
        "B_wq": _B_in["wq"],
        "B_wo": _B_in["wo"],
    }

def reference(A_x, A_k_cache, A_v_cache, A_wq, A_wo, B_x, B_k_cache, B_v_cache, B_wq, B_wo):
    def _A_ref(x, k_cache, v_cache, wq, wo):
        B, Sq, D = x.shape
        Hq, Dh = 32, 128
        Hkv = k_cache.shape[1]
        rep = Hq // Hkv
        q = (lambda x, *d: x.permute(*d))((x @ wq).reshape(B, Sq, Hq, Dh), 0, 2, 1, 3)
        k = (lambda x, n, axis: torch.repeat_interleave(x, n, dim=axis))(k_cache, rep, axis=1)
        v = (lambda x, n, axis: torch.repeat_interleave(x, n, dim=axis))(v_cache, rep, axis=1)
        scores = torch.einsum("bhqd,bhkd->bhqk", q, k) * (Dh ** -0.5)
        p = _softmax(scores, axis=-1)
        o = torch.einsum("bhqk,bhkd->bhqd", p, v)
        return (lambda x, *d: x.permute(*d))(o, 0, 2, 1, 3).reshape(B, Sq, Hq * Dh) @ wo

    def _B_ref(x, k_cache, v_cache, wq, wo):
        B, Sq, D = x.shape
        H, Dh = 32, 128
        q = (lambda x, *d: x.permute(*d))((x @ wq).reshape(B, Sq, H, Dh), 0, 2, 1, 3)
        scores = torch.einsum("bhqd,bhkd->bhqk", q, k_cache) * (Dh ** -0.5)
        p = _softmax(scores, axis=-1)
        o = torch.einsum("bhqk,bhkd->bhqd", p, v_cache)
        return (lambda x, *d: x.permute(*d))(o, 0, 2, 1, 3).reshape(B, Sq, H * Dh) @ wo

    a = _A_ref(A_x, A_k_cache, A_v_cache, A_wq, A_wo)
    b = _B_ref(B_x, B_k_cache, B_v_cache, B_wq, B_wo)
    return torch.concatenate([a, b], axis=-1)
```

```python
import re


def V(n, c=1):
    return ("v", n, c)


def A(n, c=1):
    return ("a", n, c)


def S(n, c=1):
    return ("s", n, c)


def rtxt(r):
    if isinstance(r, tuple):
        k, n, c = r
        return f"{k}{n}" if c == 1 else f"{k}[{n}:{n + c - 1}]"
    return str(r)


def regs(r):
    if isinstance(r, tuple):
        k, n, c = r
        return [(k, n + i) for i in range(c)]
    if r in ("vcc", "m0", "exec"):
        return [(r, 0)]
    if isinstance(r, str) and r.startswith("-") and len(r) > 1 and r[1] in "vas":
        m = re.fullmatch(r"-([vas])(\d+)", r)
        return [(m.group(1), int(m.group(2)))]
    return []


class I:
    __slots__ = ("text", "kind", "defs", "uses", "cuse", "ws", "abuse", "wide", "after", "sub")

    def __init__(self, text, kind, defs=(), uses=(), cuse=(), abuse=(), ws=1, wide=False, sub=None):
        self.text = text
        self.kind = kind
        self.defs = [x for d in defs for x in regs(d)]
        self.uses = [x for u in uses for x in regs(u)]
        self.cuse = [x for u in cuse for x in regs(u)]
        self.abuse = [x for u in abuse for x in regs(u)]
        self.ws = ws
        self.wide = wide
        self.sub = sub


TRANS = ("v_exp_f32", "v_rcp_f32", "v_log_f32", "v_rsq_f32", "v_sqrt_f32")


def valu(op, dst, *srcs, mods=""):
    kind = "trans" if op in TRANS else "valu"
    sub = None
    uses = list(srcs)
    defs = [dst]
    if op.startswith("v_permlane"):
        sub = "perm"
        uses = [dst] + uses
        defs = [dst, srcs[0]]
    if op in ("v_readfirstlane_b32", "v_readlane_b32"):
        sub = "rfl"
    if op.startswith("v_fmac"):
        uses = [dst] + uses
    if op.startswith("v_cndmask") and len(srcs) == 3:
        pass
    txt = f"{op} " + ", ".join(rtxt(x) for x in (dst,) + srcs) + (" " + mods if mods else "")
    return I(txt, kind, defs=defs, uses=uses, sub=sub)


def mfma(D, Aop, Bop, C):
    txt = f"v_mfma_f32_16x16x32_bf16 {rtxt(D)}, {rtxt(Aop)}, {rtxt(Bop)}, {rtxt(C)}"
    return I(txt, "mfma", defs=[D], abuse=[Aop, Bop], cuse=[C] if isinstance(C, tuple) else [])


def salu(op, dst, *srcs):
    txt = f"{op} " + ", ".join(rtxt(x) for x in (dst,) + srcs)
    return I(txt, "salu", defs=[dst], uses=list(srcs))


def scmp(op, a, b):
    return I(f"{op} {rtxt(a)}, {rtxt(b)}", "salu", uses=[a, b])


def ds_r(op, dst, addr, off=0):
    assert 0 <= off < 65536, off
    return I(f"{op} {rtxt(dst)}, {rtxt(addr)}" + (f" offset:{off}" if off else ""), "ds_r", defs=[dst], uses=[addr])


def ds_w(op, addr, src, off=0):
    assert 0 <= off < 65536, off
    return I(f"{op} {rtxt(addr)}, {rtxt(src)}" + (f" offset:{off}" if off else ""), "ds_w", uses=[addr, src])


def bload(op, dst, voff, srd, soff, off=0, mods=""):
    assert 0 <= off < 4096, off
    t = f"{op} {rtxt(dst)}, {rtxt(voff)}, {rtxt(srd)}, {rtxt(soff)} offen" + (f" offset:{off}" if off else "") + (" " + mods if mods else "")
    return I(t, "vm_l", defs=[dst], uses=[voff, srd, soff])


def bstore(op, src, voff, srd, soff, off=0, mods=""):
    assert 0 <= off < 4096, off
    t = f"{op} {rtxt(src)}, {rtxt(voff)}, {rtxt(srd)}, {rtxt(soff)} offen" + (f" offset:{off}" if off else "") + (" " + mods if mods else "")
    i = I(t, "vm_s", uses=[src, voff, srd, soff], wide=(src[2] >= 3))
    i.sub = regs(src)
    return i


def dma(voff, srd, soff, off=0, mods="nt"):
    assert 0 <= off < 4096, off
    t = f"buffer_load_dwordx4 {rtxt(voff)}, {rtxt(srd)}, {rtxt(soff)} offen" + (f" offset:{off}" if off else "") + (" " + mods if mods else "") + " lds"
    return I(t, "dma", uses=[voff, srd, soff, "m0"])


def misc(text):
    return I(text, "misc")


def label(name):
    return I(f"{name}:", "label", ws=0)


def comment(t):
    return I(f"; {t}", "label", ws=0)


def nop(n):
    return I(f"s_nop {n}", "nop", ws=n + 1)


def wait(vm=None, lgkm=None):
    t = "s_waitcnt"
    if vm is not None:
        assert 0 <= vm <= 63
        t += f" vmcnt({vm})"
    if lgkm is not None:
        t += f" lgkmcnt({lgkm})"
    return I(t, "misc")


class After:
    def __init__(self, k):
        self.k = k


def merge(M, O, lead=0):
    out = []
    mi = 0
    real = [o for o in O if not isinstance(o, After) and o.kind != "label"]
    nO = len(real)
    nM = len(M)
    done = 0
    for o in O:
        if isinstance(o, After):
            while mi < min(o.k, nM):
                out.append(M[mi])
                mi += 1
            continue
        if o.kind != "label":
            want = 0 if done < lead else int((done - lead) * nM / max(1, nO - lead)) + 1
            while mi < min(want, nM):
                out.append(M[mi])
                mi += 1
            done += 1
        out.append(o)
    while mi < nM:
        out.append(M[mi])
        mi += 1
    return out


def need(prev, cur, dist_regs):
    pass


def required(p, c):
    r = 0
    pk, ck = p.kind, c.kind
    pdefs = set(p.defs)
    isv = lambda k: k in ("valu", "trans")
    cuses = set(c.uses)
    if isv(pk):
        vd = {d for d in pdefs if d[0] in "va"}
        sd = {d for d in pdefs if d[0] == "s" or d[0] == "vcc"}
        if ck == "mfma" and vd & (set(c.abuse) | set(c.cuse)):
            r = max(r, 2)
        if isv(ck):
            if c.sub == "perm" and vd & cuses:
                r = max(r, 2)
            if c.sub == "rfl" and vd & cuses:
                r = max(r, 1)
            if sd & cuses:
                r = max(r, 2)
        if ck in ("vm_l", "vm_s", "dma") and sd & cuses:
            r = max(r, 5)
        if ck == "salu" and sd & cuses:
            r = max(r, 1)
        if pk == "trans" and (ck in ("valu", "ds_w", "vm_s")) and vd & cuses:
            r = max(r, 1)
    if pk == "mfma":
        D = pdefs
        if isv(ck) and D & (cuses | set(c.defs)):
            r = max(r, 8)
        if ck in ("ds_r", "ds_w", "vm_l", "vm_s", "dma") and D & (cuses | set(c.defs)):
            r = max(r, 8)
        if ck == "mfma":
            if D & set(c.abuse):
                r = max(r, 8)
            cc = set(c.cuse)
            if D & cc and D != cc:
                r = max(r, 6)
            if D & set(c.defs) and D != cc:
                r = max(r, 6)
        if isv(ck) and set(p.cuse) & set(c.defs):
            r = max(r, 3)
    if pk == "salu" and ("m0", 0) in pdefs and ck == "dma":
        r = max(r, 1)
    if pk == "vm_s" and p.wide:
        data = set(p.sub)
        if data & set(c.defs):
            r = max(r, 2 if isv(ck) else 1)
    return r


WINDOW = 10


def pad(ins, report_only=False, tag=""):
    out = []
    problems = []
    for c in ins:
        if c.kind in ("label",):
            out.append(c)
            continue
        dist = 0
        needn = 0
        for p in reversed(out):
            if dist >= WINDOW:
                break
            if p.kind == "label":
                continue
            r = required(p, c)
            if r > dist:
                needn = max(needn, r - dist)
                if report_only:
                    problems.append((tag, p.text, c.text, r, dist))
            dist += p.ws
        if needn and not report_only:
            while needn > 0:
                k = min(needn, 8)
                out.append(nop(k - 1))
                needn -= k
        out.append(c)
    return (out, problems)


def check_edge(ins, from_idx, to_label, n=14):
    li = next(i for i, x in enumerate(ins) if x.kind == "label" and x.text == to_label + ":")
    seq = ins[max(0, from_idx - n):from_idx + 1] + ins[li:li + 2 * n]
    pre = set(id(x) for x in ins[max(0, from_idx - n):from_idx + 1])
    out = []
    probs = []
    for c in seq:
        if c.kind == "label":
            continue
        dist = 0
        if id(c) not in pre or True:
            for p in reversed(out):
                if dist >= WINDOW:
                    break
                r = required(p, c)
                if r > dist:
                    probs.append((p.text, c.text, r, dist))
                dist += p.ws
        out.append(c)
    return probs


def check_all_edges(ins):
    probs = []
    labels = {x.text[:-1] for x in ins if x.kind == "label" and x.text.endswith(":")}
    for idx, x in enumerate(ins):
        if x.kind != "misc":
            continue
        m = re.match(r"(s_branch|s_cbranch_\w+)\s+(\w+)", x.text)
        m2 = re.match(r"s_call_b64\s+s\[\d+:\d+\],\s*(\w+)", x.text)
        tgt = m.group(2) if m else (m2.group(1) if m2 else None)
        if tgt and tgt in labels:
            for p in check_edge(ins, idx, tgt):
                probs.append((x.text,) + p)
    return probs


def render(ins):
    lines = []
    for x in ins:
        if x.kind == "label":
            lines.append(x.text)
        else:
            lines.append("    " + x.text)
    return "\n".join(lines) + "\n"
```

```python
import struct
import sys
from asmlib import *

NAME = "concat_heads__gqa_block_cached__mha_block_cached__near_ridge"


def f32(x):
    return "0x%08x" % struct.unpack("<I", struct.pack("<f", x))[0]


BLK = 1056
SLOT = 8 * BLK
RING = 4 * SLOT
SCR = 4 * RING
STATS = SCR + 24576
LDS_BYTES = 163840
QROW = 288

sW = S(3)
pAx, pAk, pAv, pAwq, pAwo, pBx, pBk, pBv, pBwq, pBwo, pOut, pDbg, pWs = [4 + 2 * i for i in range(13)]
sRing = S(30)
sT0 = S(31)
SRD1, SRD2, SRDX, SRDO = S(32, 4), S(36, 4), S(40, 4), S(44, 4)
site = {1: dict(srd=32, off=S(48), step=S(49), s25=S(50), m0=S(51), vofs=V(3)),
        2: dict(srd=36, off=S(52), step=S(53), s25=S(54), m0=S(55), vofs=V(4))}
sD, sLoop, sJob, sFlag = S(56), S(57), S(58), S(59)
RA1, RA2 = S(60, 2), S(62, 2)
sThr, sFloor, sC = S(64), S(65), S(66)
sKb, sVb, sWn = 68, 70, 72
sWnum = S(74)
sOoff = S(75)
s16k, s32k = S(76), S(77)
sT1, sT2 = S(78), S(79)
sJ, sI, sB, sP = S(80), S(81), S(82), S(83)
sT3 = S(84)

vLane = V(0)
vOfsKV, vOfsW = V(1), V(2)
vKcur, vVcur = V(5), V(6)
vK0, vV0 = V(7), V(8)
vX = V(9)
vL16 = V(10)
vQw = V(11)
vQr = V(12)
vSt = V(13)
vT0, vT1 = V(14), V(15)
S0 = 16
P0 = 64
NM0 = 88
L0 = 112
ONES = 136
Q0 = 140
X0 = 188
TMP = 236
vF = [V(236), V(237), V(238)]
vSC = [V(240 + i) for i in range(6)]
vMx, vMx2 = V(246), V(247)
vU0, vU1, vU2, vU3 = V(248), V(249), V(250), V(251)

KF, VF = 192, 224


def Sreg(qt, kt): return V(S0 + (qt * 2 + kt) * 4, 4)
def Preg(qt): return V(P0 + qt * 4, 4)
def NMreg(qt): return V(NM0 + qt * 4, 4)
def Lreg(qt): return V(L0 + qt * 4, 4)
def Qreg(qt, ks): return V(Q0 + (qt * 4 + ks) * 4, 4)
def Xreg(pos, qt): return V(X0 + (pos * 3 + qt) * 4, 4)
def Oreg(qt, dt): return A((qt * 8 + dt) * 4, 4)
def Kfrag(kt, ks): return A(KF + (kt * 4 + ks) * 4, 4)


PI = (0, 1, 3, 2)

_uid = [0]


def uid(p):
    _uid[0] += 1
    return f"L_{p}{_uid[0]}"


def refill(sn, slot=None):
    s = site[sn]
    srd = S(s["srd"], 4)
    o = []
    if slot is None:
        o.append(salu("s_mov_b32", "m0", s["m0"]))
    else:
        o.append(salu("s_add_u32", "m0", sRing, slot * SLOT))
    for n in range(8):
        if n:
            o.append(salu("s_add_u32", "m0", "m0", BLK))
            o.append(salu("s_add_u32", s["off"], s["off"], s["step"]))
        o.append(dma(s["vofs"], srd, s["off"]))
    o.append(salu("s_add_u32", s["off"], s["off"], s["s25"]))
    return o


def set_site(sn, kind, off):
    s = site[sn]
    b = s["srd"]
    o = []
    if kind in ("K", "V"):
        base = sKb if kind == "K" else sVb
        o += [salu("s_mov_b32", S(b), S(base)), salu("s_mov_b32", S(b + 1), S(base + 1)),
              salu("s_mov_b32", S(b + 2), 65536),
              salu("s_mov_b32", s["step"], 256), salu("s_mov_b32", s["s25"], 6400),
              valu("v_mov_b32", s["vofs"], vOfsKV)]
    else:
        o += [salu("s_mov_b32", S(b), S(sWn)), salu("s_mov_b32", S(b + 1), S(sWn + 1)),
              salu("s_mov_b32", S(b + 2), sWnum),
              salu("s_mov_b32", s["step"], 8192), salu("s_mov_b32", s["s25"], 25 * 8192),
              valu("v_mov_b32", s["vofs"], vOfsW)]
    o.append(salu("s_mov_b32", s["off"], off))
    return o


def kreads(addr, slotoff):
    return [ds_r("ds_read_b128", Kfrag(kt, ks), addr, slotoff + kt * 512 + ks * 64) for kt in range(2) for ks in range(4)]


def vreads(addr, slotoff, base=VF):
    return [ds_r("ds_read_b64_tr_b16", A(base + dt * 4 + hh * 2, 2), addr, slotoff + hh * 512 + dt * 32)
            for dt in range(8) for hh in range(2)]


def qk_mfmas(NQ, first=False):
    m = []
    for qt in range(NQ):
        for kt in range(2):
            for ks in range(4):
                c = Sreg(qt, kt) if ks else (0 if first else NMreg(qt))
                m.append(mfma(Sreg(qt, kt), Kfrag(kt, ks), Qreg(qt, ks), c))
    return m


def pv_mfmas(NQ):
    m = []
    for qt in range(NQ):
        for dt in range(8):
            m.append(mfma(Oreg(qt, dt), A(VF + dt * 4, 4), Preg(qt), Oreg(qt, dt)))
        m.append(mfma(Lreg(qt), V(ONES, 4), Preg(qt), Lreg(qt)))
    return m


def cond_call(cond_skip_branch, ra, target):
    l = uid("sk")
    i = misc(f"{cond_skip_branch} {l}\n    s_call_b64 {rtxt(ra)}, {target}\n{l}:")
    return i


def max_check(NQ):
    vals = [V(S0 + i) for i in range(8 * NQ)]
    half = len(vals) // 2
    o = []
    for acc, part in ((vMx, vals[:half]), (vMx2, vals[half:])):
        o.append(valu("v_max3_f32", acc, part[0], part[1], part[2]))
        k = 3
        while k + 1 < len(part):
            o.append(valu("v_max3_f32", acc, acc, part[k], part[k + 1]))
            k += 2
        if k < len(part):
            o.append(valu("v_max_f32", acc, acc, part[k]))
    o.append(valu("v_max_f32", vMx, vMx, vMx2))
    o.append(I(f"v_cmp_lt_f32 vcc, {rtxt(sThr)}, {rtxt(vMx)}", "valu", defs=["vcc"], uses=[sThr, vMx]))
    o.append(cond_call("s_cbranch_vccz", RA2, f"L_rare1_{NQ}"))
    return o


def exps(qt):
    return [valu("v_exp_f32", V(S0 + qt * 8 + i), V(S0 + qt * 8 + i)) for i in range(8)]


def cvts(qt):
    b = S0 + qt * 8
    return [valu("v_cvt_pk_bf16_f32", V(P0 + qt * 4 + i), V(b + 2 * i), V(b + 2 * i + 1)) for i in range(4)]


def rare2_check(NQ):
    return [scmp("s_cmp_eq_u32", sFlag, 0), cond_call("s_cbranch_scc1", RA2, f"L_rare2_{NQ}")]


def phase1(NQ, kind, kaddr=None, kslot=None):
    M = [] if kind == "first" else pv_mfmas(NQ)
    O = []
    if kind != "last":
        O.append(wait(vm=24))
        O += kreads(kaddr, 0 if kslot is None else kslot * SLOT)
    if kind == "first":
        O.append(misc(f"s_call_b64 {rtxt(RA2)}, L_rare1_{NQ}"))
        O.append(salu("s_mov_b32", sFloor, 0))
        O.append(salu("s_mov_b32", sFlag, 0))
    else:
        O += max_check(NQ)
    dm = []
    if kind != "last":
        dm = [wait(lgkm=0)] + refill(1, kslot)
    ex = []
    for qt in range(NQ):
        ex += exps(qt)
    mixed = []
    ne, nd = len(ex), len(dm)
    di = 0
    for i, x in enumerate(ex):
        mixed.append(x)
        if i >= 4:
            tgt = (i - 3) * nd // max(1, ne - 4)
            while di < min(tgt, nd):
                mixed.append(dm[di])
                di += 1
    mixed += dm[di:]
    O += mixed
    for qt in range(NQ):
        if M:
            O.append(After(9 * (qt + 1)))
        O += cvts(qt)
    out = merge(M, O) if M else O
    if kind != "first":
        out += rare2_check(NQ)
    return out


def phase2(NQ, vaddr, vslot, extra=()):
    M = qk_mfmas(NQ)
    O = [wait(vm=24)] + vreads(vaddr, 0 if vslot is None else vslot * SLOT) + [wait(lgkm=0)] + refill(2, vslot) + list(extra)
    return merge(M, O)


def xloads():
    o = []
    for pos in range(4):
        for qt in range(3):
            so = (0, s16k, s32k)[qt]
            for hh in range(2):
                r = Xreg(pos, qt)
                o.append(bload("buffer_load_dwordx2", V(r[1] + 2 * hh, 2), vX, SRDX, so, PI[pos] * 64 + hh * 32))
    return o


def set_x_srd(px):
    return [salu("s_mul_i32", sT0, sB, 49152),
            salu("s_lshl_b32", sT1, sW, 8),
            salu("s_add_u32", sT0, sT0, sT1),
            salu("s_add_u32", S(40), S(px), sT0),
            salu("s_addc_u32", S(41), S(px + 1), 0),
            salu("s_sub_u32", S(42), 49152, sT1)]


def set_wnext(pwq, head_expr):
    o = list(head_expr)
    o += [salu("s_lshl_b32", sT2, sT2, 8),
          salu("s_lshl_b32", sT1, sW, 20),
          salu("s_add_u32", sT2, sT2, sT1),
          salu("s_add_u32", S(sWn), S(pwq), sT2),
          salu("s_addc_u32", S(sWn + 1), S(pwq + 1), 0),
          salu("s_mov_b32", sWnum, 127 * 8192 + 256)]
    return o


def set_kv(pk, pv, idx_expr):
    o = list(idx_expr)
    o += [salu("s_lshl_b32", sT2, sT2, 18),
          salu("s_lshl_b32", sT1, sW, 16),
          salu("s_add_u32", sT2, sT2, sT1),
          salu("s_add_u32", S(sKb), S(pk), sT2),
          salu("s_addc_u32", S(sKb + 1), S(pk + 1), 0),
          salu("s_add_u32", S(sVb), S(pv), sT2),
          salu("s_addc_u32", S(sVb + 1), S(pv + 1), 0)]
    return o


def qfrag_reads(q0):
    o = []
    for ks in range(4):
        o.append(salu("s_xor_b32", sT0, sW, ks))
        o.append(salu("s_lshl_b32", sT0, sT0, 6))
        o.append(valu("v_add_u32", (vU0, vU1, vU2, vU3)[ks], sT0, vQr))
    for qt in range(3):
        for ks in range(4):
            o.append(ds_r("ds_read_b128", Qreg(q0 + qt, ks), (vU0, vU1, vU2, vU3)[ks], qt * 16 * QROW))
    o.append(wait(lgkm=0))
    return o


def job_body(NQ, tag):
    o = [comment(f"---- job body NQ={NQ}")]
    z = []
    for i in range(NQ * 32):
        z.append(valu("v_accvgpr_write_b32", A(i), 0))
    for i in range(NQ * 4):
        z.append(valu("v_mov_b32", V(L0 + i), 0))
        z.append(valu("v_mov_b32", V(NM0 + i), 0))
    o += [wait(vm=24)] + kreads(vK0, 0) + z[:48] + [wait(lgkm=0)]
    o += merge(qk_mfmas(NQ, first=True), refill(2, 0) + z[48:] + [salu("s_mov_b32", sFloor, f32(float("-inf")))])
    o += phase1(NQ, "first", vK0, 1)
    init = [valu("v_add_u32", vKcur, 3 * SLOT, vK0), valu("v_mov_b32", vVcur, vV0),
            salu("s_add_u32", site[1]["m0"], sRing, 3 * SLOT), salu("s_mov_b32", site[2]["m0"], sRing),
            salu("s_mov_b32", sD, 2 * SLOT), salu("s_mov_b32", sLoop, 1)]
    o += phase2(NQ, vV0, 2, init)
    Lh, Lsw, Lx = f"L_loop_{tag}", f"L_sw_{tag}", f"L_exit_{tag}"
    o.append(label(Lh))
    o += phase1(NQ, "mid", vKcur, None)
    tog = [valu("v_subrev_u32", vKcur, sD, vKcur), valu("v_add_u32", vVcur, sD, vVcur),
           salu("s_sub_u32", site[1]["m0"], site[1]["m0"], sD), salu("s_add_u32", site[2]["m0"], site[2]["m0"], sD),
           salu("s_sub_u32", sD, 0, sD), salu("s_add_u32", sLoop, sLoop, 1)]
    o += phase2(NQ, vVcur, None, tog)
    o.append(scmp("s_cmp_lt_u32", sLoop, 5))
    o.append(misc(f"s_cbranch_scc1 {Lh}"))
    o.append(scmp("s_cmp_eq_u32", sLoop, 7))
    o.append(misc(f"s_cbranch_scc1 {Lx}"))
    o.append(scmp("s_cmp_eq_u32", sLoop, 6))
    o.append(misc(f"s_cbranch_scc1 {Lsw}"))
    o += set_site(1, "V", 7 * 8192) + set_site(2, "W", PI[0] * 262144)
    o.append(misc(f"s_branch {Lh}"))
    o.append(label(Lsw))
    o += set_site(1, "W", PI[1] * 262144) + [salu("s_mov_b32", site[2]["off"], PI[2] * 262144)]
    o.append(misc(f"s_branch {Lh}"))
    o.append(label(Lx))
    o.append(salu("s_mov_b32", site[2]["off"], PI[3] * 262144))
    o += phase1(NQ, "last")
    o += [wait(vm=24)] + vreads(vV0, 3 * SLOT) + [wait(lgkm=0)]
    return o


def job_tail(NQ, extra):
    return merge(pv_mfmas(NQ), refill(2, 3) + list(extra))


def sub_rare1(NQ):
    o = [label(f"L_rare1_{NQ}"), nop(7)]
    for qt in range(NQ):
        b = S0 + qt * 8
        m, t = vU0, vU1
        o += [valu("v_max3_f32", m, V(b), V(b + 1), V(b + 2)), valu("v_max3_f32", m, m, V(b + 3), V(b + 4)),
              valu("v_max3_f32", m, m, V(b + 5), V(b + 6)), valu("v_max_f32", m, m, V(b + 7)),
              valu("v_mov_b32", t, m), valu("v_permlane16_swap_b32", m, t), valu("v_max_f32", m, m, t),
              valu("v_mov_b32", t, m), valu("v_permlane32_swap_b32", m, t), valu("v_max_f32", m, m, t),
              valu("v_max_f32", m, sFloor, m)]
        for i in range(8):
            o.append(valu("v_sub_f32", V(b + i), V(b + i), m))
        for i in range(4):
            o.append(valu("v_sub_f32", V(NM0 + qt * 4 + i), V(NM0 + qt * 4 + i), m))
        o.append(valu("v_sub_f32", t, 0, m))
        o.append(valu("v_exp_f32", vSC[qt], t))
    o += [salu("s_mov_b32", sFlag, 1), nop(1), misc(f"s_setpc_b64 {rtxt(RA2)}")]
    return o


def sub_rare2(NQ):
    o = [label(f"L_rare2_{NQ}"), nop(7), nop(7)]
    for qt in range(NQ):
        for i in range(0, 32, 4):
            r = qt * 32 + i
            us = (vU0, vU1, vU2, vU3)
            for k in range(4):
                o.append(valu("v_accvgpr_read_b32", us[k], A(r + k)))
            for k in range(4):
                o.append(valu("v_mul_f32", us[k], us[k], vSC[qt]))
            for k in range(4):
                o.append(valu("v_accvgpr_write_b32", A(r + k), us[k]))
        for i in range(4):
            o.append(valu("v_mul_f32", V(L0 + qt * 4 + i), V(L0 + qt * 4 + i), vSC[qt]))
    o += [salu("s_mov_b32", sFlag, 0), nop(1), misc(f"s_setpc_b64 {rtxt(RA2)}")]
    return o


def sub_qproj():
    o = [label("L_qproj")]
    fb = (VF, KF)
    sites = (1, 1, 2, 1)
    o += [wait(vm=24)] + vreads(vV0, 0, fb[0])
    for pos in range(4):
        M = []
        for qt in range(3):
            for dt in range(8):
                M.append(mfma(Oreg(qt, dt), A(fb[pos & 1] + dt * 4, 4), Xreg(pos, qt), Oreg(qt, dt) if pos else 0))
        O = refill(sites[pos], pos)
        if pos < 3:
            O += [wait(vm=24)] + vreads(vV0, (pos + 1) * SLOT, fb[(pos + 1) & 1])
        o.append(wait(lgkm=0))
        o += merge(M, O)
    for k in range(3):
        o.append(valu("v_mov_b32", vF[k], sC))
    o.append(misc(f"s_call_b64 {rtxt(RA2)}, L_combine"))
    for qt in range(3):
        for d in range(2):
            r = R0 + (qt * 2 + d) * 4
            o.append(valu("v_cvt_pk_bf16_f32", V(r), V(r), V(r + 1)))
            o.append(valu("v_cvt_pk_bf16_f32", V(r + 1), V(r + 2), V(r + 3)))
            o.append(ds_w("ds_write_b64", vQw, V(r, 2), qt * 16 * QROW + d * 32))
    o += [wait(lgkm=0), misc("s_barrier"), misc(f"s_setpc_b64 {rtxt(RA1)}")]
    return o


R0, T0, T1 = 16, 40, 64


def sub_combine():
    o = [label("L_combine"), nop(7)]

    def scaled(dst, j):
        r = []
        for qt in range(3):
            for d in range(2):
                for k in range(4):
                    r.append(valu("v_accvgpr_read_b32", V(dst + (qt * 2 + d) * 4 + k), A((qt * 8 + 2 * j + d) * 4 + k)))
                for k in range(4):
                    x = V(dst + (qt * 2 + d) * 4 + k)
                    r.append(valu("v_mul_f32", x, x, vF[qt]))
        return r
    o += [salu("s_mul_i32", sT0, sW, 6144), salu("s_add_u32", sT0, sT0, SCR), valu("v_add_u32", vT1, sT0, vL16)]
    o += scaled(T0, 1)
    o += [wait(lgkm=0), misc("s_barrier")]
    for j in range(1, 4):
        o += [salu("s_xor_b32", sT0, sW, j), salu("s_mul_i32", sT0, sT0, 6144), salu("s_add_u32", sT0, sT0, SCR),
              valu("v_add_u32", vT0, sT0, vL16)]
        for t in range(6):
            o.append(ds_w("ds_write_b128", vT0, V(T0 + t * 4, 4), t * 1024))
        if j == 1:
            o += scaled(R0, 0)
        o += [wait(lgkm=0), misc("s_barrier")]
        for t in range(6):
            o.append(ds_r("ds_read_b128", V(T1 + t * 4, 4), vT1, t * 1024))
        if j < 3:
            o += scaled(T0, j + 1)
        o += [wait(lgkm=0), misc("s_barrier")]
        for k in range(24):
            o.append(valu("v_add_f32", V(R0 + k), V(R0 + k), V(T1 + k)))
    o += [misc(f"s_setpc_b64 {rtxt(RA2)}")]
    return o


def sub_ofin():
    o = [label("L_ofin"), nop(7)]
    o += [salu("s_mul_i32", sT0, sW, 384), valu("v_add_u32", vT0, sT0, vSt)]
    for qt in range(3):
        o += [valu("v_mov_b32", V(16 + 2 * qt), V(NM0 + qt * 4)), valu("v_mov_b32", V(17 + 2 * qt), V(L0 + qt * 4)),
              ds_w("ds_write_b64", vT0, V(16 + 2 * qt, 2), qt * 128)]
    o += [wait(lgkm=0), misc("s_barrier")]
    for w in range(4):
        for qt in range(3):
            o.append(ds_r("ds_read_b64", V(24 + (qt * 4 + w) * 2, 2), vSt, w * 384 + qt * 128))
    o.append(wait(lgkm=0))
    for qt in range(3):
        b = 24 + qt * 8
        nm = [V(b + 2 * w) for w in range(4)]
        l = [V(b + 2 * w + 1) for w in range(4)]
        o += [valu("v_min3_f32", vU0, nm[0], nm[1], nm[2]), valu("v_min_f32", vU0, vU0, nm[3])]
        for w in range(4):
            o += [valu("v_sub_f32", nm[w], vU0, nm[w])]
        for w in range(4):
            o += [valu("v_exp_f32", nm[w], nm[w])]
        o += [valu("v_sub_f32", vU1, vU0, V(NM0 + qt * 4)), valu("v_exp_f32", vU1, vU1)]
        o += [valu("v_mul_f32", vU2, nm[0], l[0])]
        for w in range(1, 4):
            o += [valu("v_fma_f32", vU2, nm[w], l[w], vU2)]
        o += [valu("v_rcp_f32", vU2, vU2), valu("v_mul_f32", vF[qt], vU1, vU2)]
    o.append(misc(f"s_call_b64 {rtxt(RA2)}, L_combine"))
    o += [salu("s_mul_i32", sT0, sW, 3072), salu("s_add_u32", sT0, sT0, sOoff)]
    for qt in range(3):
        r = R0 + qt * 8
        d = T0 + qt * 4
        o += [valu("v_cvt_pk_bf16_f32", V(d + i), V(r + 2 * i), V(r + 2 * i + 1)) for i in range(4)]
        o.append(bstore("buffer_store_dwordx4", V(d, 4), vL16, SRDO, sT0, qt * 1024))
    o += [nop(1), misc(f"s_setpc_b64 {rtxt(RA1)}")]
    return o


O_WS_BYTES = 2 * 16 * 32 * 12288


def attn_kernel(kname):
    o = [label(kname)]
    o += [scmp("s_cmp_ge_u32", S(2), 256), misc("s_cbranch_scc1 L_attn_end")]
    o += [misc("s_load_dwordx16 s[4:19], s[0:1], 0"), misc("s_load_dwordx8 s[20:27], s[0:1], 64"),
          misc("s_load_dwordx2 s[28:29], s[0:1], 96")]
    o += [valu("v_lshrrev_b32", vT0, 6, V(0)), valu("v_readfirstlane_b32", sW, vT0), valu("v_and_b32", vLane, 63, V(0))]
    o += [salu("s_and_b32", sJ, S(2), 7), salu("s_lshr_b32", sI, S(2), 3),
          salu("s_lshr_b32", sB, sI, 1), salu("s_and_b32", sP, sI, 1)]
    o += [salu("s_mul_i32", sRing, sW, RING)]
    g, q = vU0, vU1
    o += [valu("v_lshrrev_b32", g, 4, vLane), valu("v_and_b32", q, 15, vLane), valu("v_lshlrev_b32", vL16, 4, vLane)]
    o += [salu("s_lshl_b32", sT0, sW, 2), valu("v_xor_b32", vT0, sT0, q), valu("v_lshlrev_b32", vT0, 4, vT0),
          valu("v_lshl_add_u32", vOfsKV, g, 11, vT0), valu("v_lshl_add_u32", vOfsW, g, 16, vT0)]
    o += [valu("v_and_b32", vT0, 7, q), valu("v_mul_u32_u24", vT0, BLK, vT0), valu("v_lshrrev_b32", vT1, 3, q),
          valu("v_lshl_add_u32", vT0, vT1, 8, vT0), valu("v_lshl_add_u32", vT0, g, 4, vT0), valu("v_add_u32", vK0, sRing, vT0)]
    o += [valu("v_bfe_u32", vT0, vLane, 2, 3), valu("v_mul_u32_u24", vT0, BLK, vT0), valu("v_lshrrev_b32", vT1, 5, vLane),
          valu("v_lshl_add_u32", vT0, vT1, 8, vT0), valu("v_and_b32", vT1, 3, vLane), valu("v_lshl_add_u32", vT0, vT1, 3, vT0),
          valu("v_add_u32", vV0, sRing, vT0)]
    o += [valu("v_lshlrev_b32", vT0, 10, q), valu("v_lshl_add_u32", vX, g, 3, vT0)]
    o += [valu("v_mul_u32_u24", vT0, QROW, q), valu("v_add_u32", vT0, SCR, vT0), valu("v_lshl_add_u32", vQr, g, 4, vT0),
          valu("v_lshl_add_u32", vT0, g, 3, vT0), salu("s_lshl_b32", sT0, sW, 6), valu("v_add_u32", vQw, sT0, vT0)]
    o += [valu("v_lshlrev_b32", vT0, 3, q), valu("v_add_u32", vSt, STATS, vT0)]
    for i in range(4):
        o.append(valu("v_mov_b32", V(ONES + i), "0x3f803f80"))
    o += [salu("s_mov_b32", sThr, f32(20.0)), salu("s_mov_b32", sC, f32(128 ** -0.5 * 1.4426950408889634)),
          salu("s_mov_b32", s16k, 16384), salu("s_mov_b32", s32k, 32768), salu("s_mov_b32", sFlag, 0)]
    for b in (35, 39, 43, 47):
        o.append(salu("s_mov_b32", S(b), "0x00020000"))
    o.append(wait(lgkm=0))
    o += [salu("s_mov_b32", S(44), S(pWs)), salu("s_mov_b32", S(45), S(pWs + 1)), salu("s_mov_b32", S(46), O_WS_BYTES)]

    hA0 = [salu("s_lshl_b32", sT2, sJ, 2), salu("s_lshl_b32", sT3, sP, 1), salu("s_add_u32", sT2, sT2, sT3)]
    o += set_wnext(pAwq, hA0)
    o += set_site(1, "W", 0)
    o += refill(1, 0) + refill(1, 1) + [salu("s_mov_b32", site[1]["off"], PI[2] * 262144)] + refill(1, 2)
    o += [salu("s_mov_b32", site[1]["off"], PI[3] * 262144)] + refill(1, 3)
    o += set_x_srd(pAx) + xloads()
    o += [salu("s_add_u32", S(sWn), S(sWn), 256), salu("s_addc_u32", S(sWn + 1), S(sWn + 1), 0)]
    o += set_site(1, "W", 0) + set_site(2, "W", 3 * 262144)
    o += set_kv(pAk, pAv, [salu("s_lshl_b32", sT2, sB, 3), salu("s_add_u32", sT2, sT2, sJ)])
    o += [wait(vm=0)]
    o.append(misc(f"s_call_b64 {rtxt(RA1)}, L_qproj"))
    o += qfrag_reads(0)
    o += set_site(1, "K", 0) + set_site(2, "V", 0)
    o.append(misc(f"s_call_b64 {rtxt(RA1)}, L_qproj"))
    o += qfrag_reads(3)
    hB0 = [salu("s_lshl_b32", sT2, sJ, 2), salu("s_add_u32", sT2, sT2, sP)]
    o += set_wnext(pBwq, hB0)
    o += job_body(6, "A")
    o += job_tail(6, set_x_srd(pBx) + xloads())
    o += hA0 + [salu("s_lshl_b32", sT3, sB, 5), salu("s_add_u32", sT2, sT2, sT3), salu("s_mul_i32", sOoff, sT2, 12288)]
    o.append(misc(f"s_call_b64 {rtxt(RA1)}, L_ofin"))
    for i in range(96):
        o.append(valu("v_accvgpr_mov_b32", A(i), A(96 + i)))
    for qt in range(3):
        o += [valu("v_mov_b32", V(NM0 + qt * 4), V(NM0 + (qt + 3) * 4)), valu("v_mov_b32", V(L0 + qt * 4), V(L0 + (qt + 3) * 4))]
    o.append(salu("s_add_u32", sOoff, sOoff, 12288))
    o.append(misc(f"s_call_b64 {rtxt(RA1)}, L_ofin"))
    o.append(salu("s_mov_b32", sJob, 0))
    o.append(wait(vm=6))
    o.append(label("L_jobB"))
    hB = [salu("s_lshl_b32", sT2, sJ, 2), salu("s_add_u32", sT2, sT2, sP), salu("s_lshl_b32", sT3, sJob, 1),
          salu("s_add_u32", sT2, sT2, sT3)]
    o += set_kv(pBk, pBv, hB + [salu("s_lshl_b32", sT3, sB, 5), salu("s_add_u32", sT2, sT2, sT3)])
    o += set_site(1, "K", 0) + set_site(2, "V", 0)
    o.append(misc(f"s_call_b64 {rtxt(RA1)}, L_qproj"))
    o += qfrag_reads(0)
    o += [salu("s_add_u32", S(sWn), S(sWn), 512), salu("s_addc_u32", S(sWn + 1), S(sWn + 1), 0),
          scmp("s_cmp_eq_u32", sJob, 0), salu("s_cselect_b32", sWnum, sWnum, 0)]
    o += job_body(3, "B")
    o += job_tail(3, [])
    o += hB + [salu("s_lshl_b32", sT3, sB, 5), salu("s_add_u32", sT2, sT2, sT3), salu("s_add_u32", sT2, sT2, 512),
               salu("s_mul_i32", sOoff, sT2, 12288)]
    o.append(misc(f"s_call_b64 {rtxt(RA1)}, L_ofin"))
    o += [salu("s_add_u32", sJob, sJob, 1), scmp("s_cmp_lt_u32", sJob, 2), misc("s_cbranch_scc1 L_jobB")]
    o.append(label("L_attn_end"))
    o.append(misc("s_endpgm"))
    o += sub_qproj() + sub_combine() + sub_ofin() + sub_rare1(6) + sub_rare1(3) + sub_rare2(6) + sub_rare2(3)
    return o


def oproj_kernel(kname):
    o = [label(kname)]
    o += [scmp("s_cmp_ge_u32", S(2), 256), misc("s_cbranch_scc1 L_op_end")]
    o += [misc("s_load_dwordx2 s[12:13], s[0:1], 32"), misc("s_load_dwordx8 s[20:27], s[0:1], 64"),
          misc("s_load_dwordx2 s[28:29], s[0:1], 96")]
    vT0, vT1, vOfs, vRd, vL16, g, q = V(1), V(2), V(3), V(4), V(5), V(6), V(7)
    vOut = V(8)
    sBr, sNb, sBb = S(80), S(81), S(82)
    o += [valu("v_lshrrev_b32", vT0, 6, V(0)), valu("v_readfirstlane_b32", sW, vT0), valu("v_and_b32", V(0), 63, V(0))]
    o += [salu("s_and_b32", sBr, S(2), 1), salu("s_bfe_u32", sT0, S(2), "0x20001"), salu("s_lshl_b32", sT0, sT0, 2),
          salu("s_lshr_b32", sT1, S(2), 6), salu("s_add_u32", sBb, sT0, sT1), salu("s_bfe_u32", sNb, S(2), "0x30003")]
    o += [salu("s_mul_i32", sRing, sW, RING)]
    o += [valu("v_lshrrev_b32", g, 4, V(0)), valu("v_and_b32", q, 15, V(0)), valu("v_lshlrev_b32", vL16, 4, V(0))]
    o += [salu("s_lshl_b32", sT0, sW, 1), valu("v_and_b32", vT0, 7, V(0)), valu("v_xor_b32", vT0, sT0, vT0),
          valu("v_lshlrev_b32", vT0, 4, vT0), valu("v_lshrrev_b32", vT1, 3, V(0)), valu("v_lshl_add_u32", vOfs, vT1, 12, vT0)]
    o += [valu("v_bfe_u32", vT0, V(0), 2, 2), valu("v_mul_u32_u24", vT0, BLK, vT0), valu("v_lshl_add_u32", vT0, g, 7, vT0),
          valu("v_and_b32", vT1, 3, V(0)), valu("v_lshl_add_u32", vT0, vT1, 3, vT0), valu("v_add_u32", vRd, sRing, vT0)]
    for b in (35, 39, 43):
        o.append(salu("s_mov_b32", S(b), "0x00020000"))
    o.append(wait(lgkm=0))
    o += [scmp("s_cmp_eq_u32", sBr, 0), salu("s_cselect_b32", S(32), S(12), S(22)), salu("s_cselect_b32", S(33), S(13), S(23)),
          salu("s_lshl_b32", sT0, sW, 20), salu("s_lshl_b32", sT1, sNb, 7), salu("s_add_u32", sT0, sT0, sT1),
          salu("s_add_u32", S(32), S(32), sT0), salu("s_addc_u32", S(33), S(33), 0), salu("s_mov_b32", S(34), 1023 * 1024 + 128)]
    o += [salu("s_lshl_b32", sT0, sBr, 4), salu("s_add_u32", sT0, sT0, sBb), salu("s_lshl_b32", sT0, sT0, 5),
          salu("s_lshl_b32", sT1, sW, 3), salu("s_add_u32", sT0, sT0, sT1), salu("s_mul_i32", sT0, sT0, 12288),
          salu("s_add_u32", S(36), S(28), sT0), salu("s_addc_u32", S(37), S(29), 0), salu("s_mov_b32", S(38), 8 * 12288)]
    o += [salu("s_mov_b32", S(40), S(24)), salu("s_mov_b32", S(41), S(25)), salu("s_mov_b32", S(42), 16 * 48 * 1024 * 2)]
    sWoff, sOo, sCnt, sM = S(48), S(49), S(50), S(51)
    WSRD, OSRD = S(32, 4), S(36, 4)

    def wfill(slot):
        r = []
        for n in range(8):
            r.append(salu("s_add_u32", "m0", sRing, slot * SLOT + n * BLK))
            r.append(salu("s_add_u32", sT0, sWoff, (32 * (n >> 2) + (n & 3)) * 1024))
            r.append(dma(vOfs, WSRD, sT0))
        r.append(salu("s_add_u32", sWoff, sWoff, 65536))
        return r
    OF = 16

    def Of(buf, u, qt): return V(OF + ((buf * 2 + u) * 3 + qt) * 4, 4)

    def ofill(buf):
        r = []
        for u in range(2):
            for qt in range(3):
                off = (u * 3 + qt) * 1024
                if off < 4096:
                    r.append(bload("buffer_load_dwordx4", Of(buf, u, qt), vL16, OSRD, sOo, off))
                else:
                    if off == 4096:
                        r.append(salu("s_add_u32", sT1, sOo, 4096))
                    r.append(bload("buffer_load_dwordx4", Of(buf, u, qt), vL16, OSRD, sT1, off - 4096))
        r.append(salu("s_add_u32", sOo, sOo, 6144))
        return r
    ACC = 112
    WF = 160

    def acc(nt, qt): return V(ACC + (nt * 3 + qt) * 4, 4)
    o += [salu("s_mov_b32", sWoff, 0), salu("s_mov_b32", sOo, 0), salu("s_mov_b32", sCnt, 0)]
    for s in range(4):
        o += wfill(s) + ofill(s)
    for i in range(48):
        o.append(valu("v_mov_b32", V(ACC + i), 0))
    o.append(label("L_op_loop"))
    for s in range(4):
        o.append(wait(vm=42))
        for u in range(2):
            for nt in range(4):
                for hh in range(2):
                    o.append(ds_r("ds_read_b64_tr_b16", V(WF + (u * 4 + nt) * 4 + hh * 2, 2), vRd,
                                  s * SLOT + u * 4 * BLK + hh * 512 + nt * 32))
        o.append(wait(lgkm=0))
        M = []
        for u in range(2):
            for nt in range(4):
                for qt in range(3):
                    M.append(mfma(acc(nt, qt), V(WF + (u * 4 + nt) * 4, 4), Of(s, u, qt), acc(nt, qt)))
        o += merge(M, wfill(s))
        o += ofill(s)
    o += [salu("s_add_u32", sCnt, sCnt, 1), scmp("s_cmp_lt_u32", sCnt, 4), misc("s_cbranch_scc1 L_op_loop")]
    o += [wait(vm=0), misc("s_barrier")]
    for j in range(1, 4):
        o += [salu("s_xor_b32", sT0, sW, j), salu("s_mul_i32", sT0, sT0, 9216), valu("v_add_u32", vT0, sT0, vL16)]
        for qt in range(3):
            o.append(ds_w("ds_write_b128", vT0, acc(j, qt), ((j - 1) * 3 + qt) * 1024))
    o += [wait(lgkm=0), misc("s_barrier")]
    o += [salu("s_mul_i32", sT0, sW, 9216), valu("v_add_u32", vT0, sT0, vL16)]
    for t in range(9):
        o.append(ds_r("ds_read_b128", V(OF + t * 4, 4), vT0, t * 1024))
    o += [salu("s_mul_i32", sT0, sBb, 48 * 2048), salu("s_lshl_b32", sT1, sBr, 10), salu("s_add_u32", sT0, sT0, sT1),
          salu("s_lshl_b32", sT1, sNb, 7), salu("s_add_u32", sT0, sT0, sT1), salu("s_lshl_b32", sT1, sW, 5),
          salu("s_add_u32", sT0, sT0, sT1), valu("v_lshlrev_b32", vOut, 11, q), valu("v_lshl_add_u32", vOut, g, 3, vOut)]
    o.append(wait(lgkm=0))
    for qt in range(3):
        for k in range(4):
            a = V(ACC + qt * 4 + k)
            o += [valu("v_add_f32", a, a, V(OF + qt * 4 + k)),
                  valu("v_add_f32", V(OF + 12 + qt * 4 + k), V(OF + 12 + qt * 4 + k), V(OF + 24 + qt * 4 + k)),
                  valu("v_add_f32", a, a, V(OF + 12 + qt * 4 + k))]
        a = ACC + qt * 4
        o += [valu("v_cvt_pk_bf16_f32", V(a), V(a), V(a + 1)), valu("v_cvt_pk_bf16_f32", V(a + 1), V(a + 2), V(a + 3))]
        o.append(bstore("buffer_store_dwordx2", V(a, 2), vOut, S(40, 4), sT0))
        o.append(salu("s_add_u32", sT0, sT0, 16 * 2048))
    o.append(label("L_op_end"))
    o.append(misc("s_endpgm"))
    return o


def kd(name, nv, acc):
    return f""".p2align 6
.amdhsa_kernel {name}
  .amdhsa_next_free_vgpr {nv}
  .amdhsa_next_free_sgpr 102
  .amdhsa_accum_offset {acc}
  .amdhsa_group_segment_fixed_size 0
  .amdhsa_kernarg_size 104
  .amdhsa_user_sgpr_count 2
  .amdhsa_user_sgpr_kernarg_segment_ptr 1
  .amdhsa_system_sgpr_workgroup_id_x 1
.end_amdhsa_kernel
"""


def finish(ins):
    ins, _ = pad(ins)
    pr = check_all_edges(ins)
    for p in pr:
        print("EDGE HAZARD:", p, file=sys.stderr)
    return render(ins)


def main(path):
    k1 = NAME + "_kernel"
    k2 = "oproj_kernel"
    hdr = open("cdna_kernels/" + NAME + ".s.ref").read().split("; Override launch")[0]
    t = hdr
    t += f"; @launch kernel={k1} grid=(256,1,1) block=(256,1,1) lds={LDS_BYTES}\n"
    t += f"; @launch kernel={k2} grid=(256,1,1) block=(256,1,1) lds={4 * RING}\n"
    t += '.amdgcn_target "amdgcn-amd-amdhsa--gfx950"\n.text\n'
    for k, gen in ((k1, attn_kernel), (k2, oproj_kernel)):
        t += f".globl {k}\n.p2align 8\n.type {k},@function\n"
        t += finish(gen(k))
    t += '.section .rodata,"a"\n'
    t += kd(k1, 512, 256) + kd(k2, 256, 256)
    open(path, "w").write(t)


if __name__ == "__main__":
    main(sys.argv[1] if len(sys.argv) > 1 else "cdna_kernels/" + NAME + ".s")
```

```python
import struct
import sys
from asmlib import *

NAME = "concat_heads__gqa_block_cached__mha_block_cached__near_ridge"

CFG = dict(pmod="", rmod="", op_now=False, op_noo=False, opmod="", nd=2, thr=0, ramp=False, oprot=True, dqA=0, dqB=0, late=0, kwaitA=False, kwaitB=False, rot=True, fine=False, kposA=0, kposB=-1, lateq=True, wmod="", touch=True, ktouch=2, DB=4, DA=4, stamp=False, prioA=True, a_first=False)


def f32(x):
    return "0x%08x" % struct.unpack("<I", struct.pack("<f", x))[0]


BLK = 1056
SLOT = 8 * BLK
RING = 4 * SLOT
SCR = 2 * RING
STATS = SCR + 12288
LDS_BYTES = 81920
QROW = 288
NSTEP = 16
KVSTR = 16384

sW = S(3)
pAx, pAk, pAv, pAwq, pAwo, pBx, pBk, pBv, pBwq, pBwo, pOut, pDbg, pWs = [4 + 2 * i for i in range(13)]
sRing = S(30)
sT0 = S(31)
SRDW, SRDX, SRDO = S(40, 4), S(44, 4), S(96, 4)
site = {1: dict(srd=32, off=S(48), m0=S(51)),
        2: dict(srd=36, off=S(52), m0=S(55))}
sWoff = S(49)
sXoff = S(50)
sKap, sXb = S(53), S(54)
sD, sLoop, sJob, sFlag = S(56), S(57), S(58), S(59)
RA1, RA2 = S(60, 2), S(62, 2)
sThr, sFloor, sC = S(64), S(65), S(66)
sKb, sVb, sKn, sVn = 68, 70, 72, 74
sNnum = S(76)
sCnum = S(77)
sOoff = S(67)
sT1, sT2, sT3 = S(78), S(79), S(84)
sJ, sI, sB, sH = S(80), S(81), S(82), S(83)
sJ2 = S(83)

vLane = V(0)
vOfsKV, vOfsW = V(1), V(2)
vKcur, vVcur = V(5), V(6)
vK0, vV0 = V(7), V(8)
vX = V(9)
vL16 = V(10)
vQw = V(11)
vQr = V(12)
vSt = V(13)
vT0, vT1 = V(14), V(15)
S0 = 16
P0 = 64
NM0 = 88
L0 = 112
ONES = 136
Q0 = 140
X0 = 40
TP = 16
R0 = 188
vF = [V(236), V(237), V(238)]
vG = [V(252), V(253), V(254)]
vSC = [V(240 + i) for i in range(6)]
vMx, vMx2 = V(246), V(247)
vU0, vU1, vU2, vU3 = V(248), V(249), V(250), V(251)
vStamp, vZero = V(255), V(4)
vXr = V(3)

KF, VF = 192, 224


def Sreg(qt, kt): return V(S0 + (qt * 2 + kt) * 4, 4)
def Preg(qt): return V(P0 + qt * 4, 4)
def NMreg(qt): return V(NM0 + qt * 4, 4)
def Lreg(qt): return V(L0 + qt * 4, 4)
def Qreg(qt, ks): return V(Q0 + (qt * 4 + ks) * 4, 4)
def Oreg(qt, dt): return A((qt * 8 + dt) * 4, 4)
def Kfrag(kt, ks): return A(KF + (kt * 4 + ks) * 4, 4)


_uid = [0]
STAMP_BASE = 48 << 20


def uid(p):
    _uid[0] += 1
    return f"L_{p}{_uid[0]}"


def stamp(real=False):
    if not CFG["stamp"]:
        return []
    return [misc(("s_memrealtime" if real else "s_memtime") + " s[86:87]"), wait(lgkm=0), valu("v_mov_b32", vStamp, S(86)),
            bstore("buffer_store_dword", vStamp, vZero, S(88, 4), S(92)), salu("s_add_u32", S(92), S(92), 4)]


def stamp_once():
    if not CFG["stamp"]:
        return []
    l = uid("st")
    return [scmp("s_cmp_lg_u32", sJob, 0), misc(f"s_cbranch_scc1 {l}")] + stamp() + [label(l)]


def stamp_init():
    if not CFG["stamp"]:
        return []
    return [salu("s_add_u32", S(88), S(pWs), STAMP_BASE), salu("s_addc_u32", S(89), S(pWs + 1), 0),
            salu("s_mov_b32", S(90), 1 << 20), salu("s_mov_b32", S(91), "0x00020000"),
            salu("s_lshl_b32", S(92), S(2), 1), salu("s_add_u32", S(92), S(92), sW), salu("s_lshl_b32", S(92), S(92), 8),
            valu("v_mov_b32", vZero, 0),
            misc("s_getreg_b32 s86, hwreg(HW_REG_HW_ID)"), valu("v_mov_b32", vStamp, S(86)),
            bstore("buffer_store_dword", vStamp, vZero, S(88, 4), S(92), 252),
            misc("s_getreg_b32 s86, hwreg(HW_REG_XCC_ID)"), valu("v_mov_b32", vStamp, S(86)),
            bstore("buffer_store_dword", vStamp, vZero, S(88, 4), S(92), 248)]


def refill(sn, slot=None):
    s = site[sn]
    srd = S(s["srd"], 4)
    o = []
    if slot is None:
        o.append(salu("s_mov_b32", "m0", s["m0"]))
    else:
        o.append(salu("s_add_u32", "m0", sRing, slot * SLOT))
    for n in range(8):
        if n:
            o.append(salu("s_add_u32", "m0", "m0", BLK - 256))
        o.append(dma(vOfsKV, srd, s["off"], n * 256))
    o.append(salu("s_add_u32", s["off"], s["off"], KVSTR))
    return o


def wfill(slot):
    o = []
    for n in range(8):
        o.append(salu("s_add_u32", "m0", sRing, slot * SLOT + n * BLK))
        if n:
            o.append(salu("s_add_u32", sWoff, sWoff, 8192 * (5 if n == 4 else 1)))
        o.append(dma(vOfsW, SRDW, sWoff, 0, mods=CFG["wmod"]))
    return o


def xfill(slot, nt):
    o = [salu("s_mov_b32", sT0, sXoff)]
    for t in range(nt):
        o.append(salu("s_add_u32", "m0", sRing, slot * SLOT + t * BLK))
        if t:
            o.append(salu("s_add_u32", sT0, sT0, 16384 if t != 3 else 8 * 49152 - 32768))
        o.append(dma(vX, SRDX, sT0, 0, mods=CFG["wmod"]))
    return o


def xreads(slot, Xreg, par, nt):
    return [ds_r("ds_read_b128", Xreg(par, t), vXr, slot * SLOT + t * BLK) for t in range(nt)]


def set_site(sn, kind, idx):
    s = site[sn]
    b = s["srd"]
    base = dict(K=sKb, V=sVb, Kn=sKn, Vn=sVn)[kind]
    num = sCnum if kind in ("K", "V") else sNnum
    return [salu("s_mov_b32", S(b), S(base)), salu("s_mov_b32", S(b + 1), S(base + 1)),
            salu("s_mov_b32", S(b + 2), num), salu("s_mov_b32", s["off"], idx * KVSTR)]


def kreads(addr, slotoff):
    return [ds_r("ds_read_b128", Kfrag(kt, ks), addr, slotoff + kt * 512 + ks * 64) for kt in range(2) for ks in range(4)]


def vreads(addr, slotoff, base=VF):
    return [ds_r("ds_read_b64_tr_b16", A(base + dt * 4 + hh * 2, 2), addr, slotoff + hh * 512 + dt * 32)
            for dt in range(8) for hh in range(2)]


def qk_mfmas(NQ, first=False):
    m = []
    for qt in range(NQ):
        for kt in range(2):
            for ks in range(4):
                c = Sreg(qt, kt) if ks else (0 if first else NMreg(qt))
                m.append(mfma(Sreg(qt, kt), Kfrag(kt, ks), Qreg(qt, ks), c))
    return m


def pv_mfmas(NQ):
    m = []
    for qt in range(NQ):
        for dt in range(8):
            m.append(mfma(Oreg(qt, dt), A(VF + dt * 4, 4), Preg(qt), Oreg(qt, dt)))
        m.append(mfma(Lreg(qt), V(ONES, 4), Preg(qt), Lreg(qt)))
    return m


def cond_call(cond_skip_branch, ra, target):
    l = uid("sk")
    return misc(f"{cond_skip_branch} {l}\n    s_call_b64 {rtxt(ra)}, {target}\n{l}:")


def call(ra, target):
    return misc(f"s_call_b64 {rtxt(ra)}, {target}")


def max_check(NQ):
    vals = [V(S0 + i) for i in range(8 * NQ)]
    half = len(vals) // 2
    o = []
    for acc, part in ((vMx, vals[:half]), (vMx2, vals[half:])):
        o.append(valu("v_max3_f32", acc, part[0], part[1], part[2]))
        k = 3
        while k + 1 < len(part):
            o.append(valu("v_max3_f32", acc, acc, part[k], part[k + 1]))
            k += 2
        if k < len(part):
            o.append(valu("v_max_f32", acc, acc, part[k]))
    o.append(valu("v_max_f32", vMx, vMx, vMx2))
    o.append(I(f"v_cmp_lt_f32 vcc, {rtxt(sThr)}, {rtxt(vMx)}", "valu", defs=["vcc"], uses=[sThr, vMx]))
    o.append(cond_call("s_cbranch_vccz", RA2, f"L_rare1_{NQ}"))
    return o


def exps(qt):
    return [valu("v_exp_f32", V(S0 + qt * 8 + i), V(S0 + qt * 8 + i)) for i in range(8)]


def cvts(qt):
    b = S0 + qt * 8
    return [valu("v_cvt_pk_bf16_f32", V(P0 + qt * 4 + i), V(b + 2 * i), V(b + 2 * i + 1)) for i in range(4)]


def rare2_check(NQ):
    return [scmp("s_cmp_eq_u32", sFlag, 0), cond_call("s_cbranch_scc1", RA2, f"L_rare2_{NQ}")]


def spread(a, b, start=4):
    mixed = []
    na, nb = len(a), len(b)
    bi = 0
    for i, x in enumerate(a):
        mixed.append(x)
        if i >= start:
            tgt = (i - start + 1) * nb // max(1, na - start)
            while bi < min(tgt, nb):
                mixed.append(b[bi])
                bi += 1
    return mixed + b[bi:]


def throttle(NQ):
    if NQ != 3 or not CFG["thr"]:
        return []
    l = uid("th")
    return [scmp("s_cmp_lg_u32", sJob, 0), misc(f"s_cbranch_scc1 {l}\n    s_waitcnt vmcnt({CFG['thr']})\n{l}:")]


def phase1(NQ, D, kind, kaddr=None, kslot=None):
    M = [] if kind == "first" else pv_mfmas(NQ)
    O = []
    if kind != "last":
        O.append(wait(vm=8 * (D - 1)))
        O += kreads(kaddr, 0 if kslot is None else kslot * SLOT)
    if kind == "first":
        O.append(call(RA2, f"L_rare1_{NQ}"))
        O.append(salu("s_mov_b32", sFloor, 0))
        O.append(salu("s_mov_b32", sFlag, 0))
    else:
        O += max_check(NQ)
    dm = []
    if kind != "last":
        dm = [wait(lgkm=0)] + (throttle(NQ) if kind == "mid" else []) + refill(1, kslot)
    ex = []
    for qt in range(NQ):
        ex += exps(qt)
    O += spread(ex, dm)
    for qt in range(NQ):
        if M:
            O.append(After(9 * (qt + 1)))
        O += cvts(qt)
    out = merge(M, O) if M else O
    if kind != "first":
        out += rare2_check(NQ)
    return out


def phase2(NQ, D, vaddr, vslot, extra=()):
    M = qk_mfmas(NQ)
    O = [wait(vm=8 * (D - 1))] + vreads(vaddr, 0 if vslot is None else vslot * SLOT) + [wait(lgkm=0)] + (throttle(NQ) if vslot is None else []) + refill(2, vslot) + list(extra)
    return merge(M, O)


def prime_list(D, nxt):
    k, v = ("Kn", "Vn") if nxt else ("K", "V")
    return [(k, 0), (k, 1), (v, 0), (k, 2)][:D]


def job_body(NQ, D, tag):
    o = [comment(f"---- job body NQ={NQ} D={D}")]
    last = NSTEP - 1
    z = []
    for i in range(NQ * 32):
        z.append(valu("v_accvgpr_write_b32", A(i), 0))
    for i in range(NQ * 4):
        z.append(valu("v_mov_b32", V(L0 + i), 0))
        z.append(valu("v_mov_b32", V(NM0 + i), 0))
    for i in range(4):
        z.append(valu("v_mov_b32", V(ONES + i), "0x3f803f80"))
    if D == 4:
        o += set_site(1, "K", 3) + set_site(2, "V", 1)
    else:
        o += set_site(1, "K", 2) + set_site(2, "V", 0)
    o += [wait(vm=8 * (D - 1))] + kreads(vK0, 0) + z[:48] + [wait(lgkm=0)]
    o += merge(qk_mfmas(NQ, first=True), refill(2, 0) + z[48:] + [salu("s_mov_b32", sFloor, f32(float("-inf")))])
    o += phase1(NQ, D, "first", vK0, 1)
    Lh, Lsw, Lx = f"L_loop_{tag}", f"L_sw_{tag}", f"L_exit_{tag}"
    if D == 4:
        init = [valu("v_add_u32", vKcur, 3 * SLOT, vK0), valu("v_mov_b32", vVcur, vV0),
                salu("s_add_u32", site[1]["m0"], sRing, 3 * SLOT), salu("s_mov_b32", site[2]["m0"], sRing),
                salu("s_mov_b32", sD, 2 * SLOT), salu("s_mov_b32", sLoop, 1)]
        o += phase2(NQ, D, vV0, 2, init)
        o.append(label(Lh))
        o += phase1(NQ, D, "mid", vKcur, None)
        tog = [valu("v_subrev_u32", vKcur, sD, vKcur), valu("v_add_u32", vVcur, sD, vVcur),
               salu("s_sub_u32", site[1]["m0"], site[1]["m0"], sD), salu("s_add_u32", site[2]["m0"], site[2]["m0"], sD),
               salu("s_sub_u32", sD, 0, sD), salu("s_add_u32", sLoop, sLoop, 1)]
        o += phase2(NQ, D, vVcur, None, tog)
        o += [scmp("s_cmp_lt_u32", sLoop, last - 2), misc(f"s_cbranch_scc1 {Lh}"),
              scmp("s_cmp_eq_u32", sLoop, last), misc(f"s_cbranch_scc1 {Lx}"),
              scmp("s_cmp_eq_u32", sLoop, last - 1), misc(f"s_cbranch_scc1 {Lsw}")]
        o += set_site(1, "V", last) + set_site(2, "Kn", 0) + [misc(f"s_branch {Lh}")]
        o.append(label(Lsw))
        o += set_site(1, "Kn", 1) + set_site(2, "Vn", 0) + [misc(f"s_branch {Lh}")]
        o.append(label(Lx))
        o += set_site(2, "Kn", 2)
        vlast = 3
    else:
        o += phase2(NQ, D, vV0, 0, [salu("s_mov_b32", sLoop, 1)])
        o.append(label(Lh))
        o += phase1(NQ, D, "mid", vK0, 1)
        o += phase2(NQ, D, vV0, 0, [salu("s_add_u32", sLoop, sLoop, 1)])
        o += [scmp("s_cmp_lt_u32", sLoop, last - 1), misc(f"s_cbranch_scc1 {Lh}"),
              scmp("s_cmp_eq_u32", sLoop, last), misc(f"s_cbranch_scc1 {Lx}")]
        o += set_site(1, "V", last) + set_site(2, "Kn", 0) + [misc(f"s_branch {Lh}")]
        o.append(label(Lx))
        o += set_site(2, "Kn", 1)
        vlast = 1
    o += phase1(NQ, D, "last")
    o += [wait(vm=8 * (D - 1))] + vreads(vV0, vlast * SLOT) + [wait(lgkm=0)]
    o += merge(pv_mfmas(NQ), refill(2, vlast))
    return o


def sub_rare1(NQ):
    o = [label(f"L_rare1_{NQ}"), nop(7)]
    for qt in range(NQ):
        b = S0 + qt * 8
        m, t = vU0, vU1
        o += [valu("v_max3_f32", m, V(b), V(b + 1), V(b + 2)), valu("v_max3_f32", m, m, V(b + 3), V(b + 4)),
              valu("v_max3_f32", m, m, V(b + 5), V(b + 6)), valu("v_max_f32", m, m, V(b + 7)),
              valu("v_mov_b32", t, m), valu("v_permlane16_swap_b32", m, t), valu("v_max_f32", m, m, t),
              valu("v_mov_b32", t, m), valu("v_permlane32_swap_b32", m, t), valu("v_max_f32", m, m, t),
              valu("v_max_f32", m, sFloor, m)]
        for i in range(8):
            o.append(valu("v_sub_f32", V(b + i), V(b + i), m))
        for i in range(4):
            o.append(valu("v_sub_f32", V(NM0 + qt * 4 + i), V(NM0 + qt * 4 + i), m))
        o.append(valu("v_sub_f32", t, 0, m))
        o.append(valu("v_exp_f32", vSC[qt], t))
    o += [salu("s_mov_b32", sFlag, 1), nop(1), misc(f"s_setpc_b64 {rtxt(RA2)}")]
    return o


def sub_rare2(NQ):
    o = [label(f"L_rare2_{NQ}"), nop(7), nop(7)]
    for qt in range(NQ):
        for i in range(0, 32, 4):
            r = qt * 32 + i
            us = (vU0, vU1, vU2, vU3)
            for k in range(4):
                o.append(valu("v_accvgpr_read_b32", us[k], A(r + k)))
            for k in range(4):
                o.append(valu("v_mul_f32", us[k], us[k], vSC[qt]))
            for k in range(4):
                o.append(valu("v_accvgpr_write_b32", A(r + k), us[k]))
        for i in range(4):
            o.append(valu("v_mul_f32", V(L0 + qt * 4 + i), V(L0 + qt * 4 + i), vSC[qt]))
    o += [salu("s_mov_b32", sFlag, 0), nop(1), misc(f"s_setpc_b64 {rtxt(RA2)}")]
    return o


def Rreg(qt, d): return R0 + (qt * 4 + d) * 4


def sub_combine():
    o = [label("L_combine"), nop(7)]
    o += [salu("s_mul_i32", sT0, sW, 6144), salu("s_add_u32", sT1, sT0, SCR), valu("v_add_u32", vT1, sT1, vL16),
          salu("s_sub_u32", sT0, SCR + 6144, sT0), valu("v_add_u32", vT0, sT0, vL16)]
    o += [wait(lgkm=0), misc("s_barrier")]
    for rnd in range(2):
        for qt in range(3):
            for d in range(2):
                o.append(ds_w("ds_write_b128", vT0, Oreg(qt, 4 + 2 * rnd + d), (qt * 2 + d) * 1024))
        for qt in range(3):
            for d in range(2):
                r = Rreg(qt, 2 * rnd + d)
                for k in range(4):
                    o.append(valu("v_accvgpr_read_b32", V(r + k), A((qt * 8 + 2 * rnd + d) * 4 + k)))
                for k in range(4):
                    o.append(valu("v_mul_f32", V(r + k), V(r + k), vF[qt]))
        o += [wait(lgkm=0), misc("s_barrier")]
        for t in range(6):
            o.append(ds_r("ds_read_b128", V(TP + t * 4, 4), vT1, t * 1024))
        o += [wait(lgkm=0), misc("s_barrier")]
        for qt in range(3):
            for d in range(2):
                r = Rreg(qt, 2 * rnd + d)
                for k in range(4):
                    o.append(valu("v_fma_f32", V(r + k), V(TP + (qt * 2 + d) * 4 + k), vG[qt], V(r + k)))
    o += [misc(f"s_setpc_b64 {rtxt(RA2)}")]
    return o


def sub_qfin():
    o = [label("L_qfin")]
    for k in range(3):
        o += [valu("v_mov_b32", vF[k], sC), valu("v_mov_b32", vG[k], sC)]
    o.append(call(RA2, "L_combine"))
    for qt in range(3):
        for d in range(4):
            r = Rreg(qt, d)
            o.append(valu("v_cvt_pk_bf16_f32", V(r), V(r), V(r + 1)))
            o.append(valu("v_cvt_pk_bf16_f32", V(r + 1), V(r + 2), V(r + 3)))
            o.append(ds_w("ds_write_b64", vQw, V(r, 2), qt * 16 * QROW + d * 32))
    o += [wait(lgkm=0), misc("s_barrier"), misc(f"s_setpc_b64 {rtxt(RA1)}")]
    return o


def qfrag_reads(dst):
    o = [salu("s_lshl_b32", sT0, sW, 7), valu("v_add_u32", vU0, sT0, vQr),
         salu("s_xor_b32", sT0, sT0, 128), valu("v_add_u32", vU1, sT0, vQr)]
    for qt in range(3):
        for ks in range(4):
            o.append(ds_r("ds_read_b128", dst(qt, ks), vU0 if ks < 2 else vU1, qt * 16 * QROW + (ks & 1) * 64))
    o.append(wait(lgkm=0))
    return o


def sub_ofin():
    o = [label("L_ofin"), nop(7)]
    o += [salu("s_mul_i32", sT0, sW, 384), valu("v_add_u32", vT0, sT0, vSt),
          salu("s_sub_u32", sT0, 384, sT0), valu("v_add_u32", vT1, sT0, vSt)]
    for qt in range(3):
        o += [valu("v_mov_b32", V(16 + 2 * qt), V(NM0 + qt * 4)), valu("v_mov_b32", V(17 + 2 * qt), V(L0 + qt * 4)),
              ds_w("ds_write_b64", vT0, V(16 + 2 * qt, 2), qt * 128)]
    o += [wait(lgkm=0), misc("s_barrier")]
    for qt in range(3):
        o.append(ds_r("ds_read_b64", V(24 + qt * 2, 2), vT1, qt * 128))
    o.append(wait(lgkm=0))
    for qt in range(3):
        nmo, lo = V(24 + 2 * qt), V(25 + 2 * qt)
        nms, ls = V(16 + 2 * qt), V(17 + 2 * qt)
        o += [valu("v_min_f32", vU0, nmo, nms),
              valu("v_sub_f32", vU1, vU0, nms), valu("v_sub_f32", vU2, vU0, nmo),
              valu("v_exp_f32", vU1, vU1), valu("v_exp_f32", vU2, vU2),
              valu("v_mul_f32", vU3, vU1, ls), valu("v_fma_f32", vU3, vU2, lo, vU3),
              valu("v_rcp_f32", vU3, vU3),
              valu("v_mul_f32", vF[qt], vU1, vU3), valu("v_mul_f32", vG[qt], vU2, vU3)]
    o.append(call(RA2, "L_combine"))
    for kk in range(2):
        for qt in range(3):
            r = Rreg(qt, 2 * kk)
            d = TP + (kk * 3 + qt) * 4
            o += [valu("v_cvt_pk_bf16_f32", V(d + i), V(r + 2 * i), V(r + 2 * i + 1)) for i in range(4)]
            o.append(ds_w("ds_write_b128", vT1, V(d, 4), (kk * 3 + qt) * 1024))
    o += [valu("v_add_u32", vT0, SCR, vL16), wait(lgkm=0), misc("s_barrier"), misc(f"s_setpc_b64 {rtxt(RA1)}")]
    return o


def ofrag_reads(dst):
    return [ds_r("ds_read_b128", dst(ks, qt), vT0, (ks * 3 + qt) * 1024) for ks in range(4) for qt in range(3)] + [wait(lgkm=0)]


PB_A = 0
PB_B = 256 * 49152
FA, FB = 140, 40
vOfsWo = V(2)


def wo_setup(pwo):
    return [salu("s_lshl_b32", sT2, sH, 17), salu("s_lshl_b32", sT1, sW, 9), salu("s_add_u32", sT2, sT2, sT1),
            salu("s_add_u32", S(40), S(pwo), sT2), salu("s_addc_u32", S(41), S(pwo + 1), 0),
            salu("s_mov_b32", S(42), 255 * 1024 + 512),
            valu("v_lshrrev_b32", vT0, 4, vLane), valu("v_lshlrev_b32", vT0, 13, vT0), valu("v_and_b32", vT1, 15, vLane),
            valu("v_lshl_add_u32", vOfsWo, vT1, 4, vT0)]


def wofill(slot, ks, cb):
    o = []
    for n in range(8):
        o.append(salu("s_add_u32", "m0", sRing, slot * SLOT + n * BLK))
        o.append(salu("s_mov_b32", sT0, ks * 32768 + cb * 256 + n * 1024))
        o.append(dma(vOfsWo, SRDW, sT0, 0, mods=CFG["wmod"]))
    return o


def opart(role):
    fb = (VF, KF)
    if role == "A":
        seq = [(ks, cb) for cb in range(2) for ks in range(8)]
        nt_ = 3
        def F(ks, t): return V((FA if ks < 4 else FB) + ((ks & 3) * 3 + t) * 4, 4)
        def acc(cb, nt, t): return A(((cb * 8 + nt) * 3 + t) * 4, 4)
    else:
        seq = [(ks, cb) for cb in range(2) for ks in range(4)]
        nt_ = 6
        def F(ks, t): return V((FB if t < 3 else FA) + (ks * 3 + t % 3) * 4, 4)
        def acc(cb, nt, t): return A((nt * 6 + t) * 4, 4)
    ne = len(seq)
    pre = []
    for e in range(4):
        pre += wofill(e, *seq[e])
    nst = [0]

    def stores(cb):
        r = [nop(7)]
        for t in range(nt_):
            for pr in range(4):
                d = 16 + (nst[0] % 6) * 4
                nst[0] += 1
                for h in range(2):
                    a = acc(cb, 2 * pr + h, t)[1]
                    for k in range(4):
                        r.append(valu("v_accvgpr_read_b32", (vU0, vU1, vU2, vU3)[k], A(a + k)))
                    r += [valu("v_cvt_pk_bf16_f32", V(d + 2 * h), vU0, vU1), valu("v_cvt_pk_bf16_f32", V(d + 2 * h + 1), vU2, vU3)]
                off = ((cb * 4 + pr) * 3 + t % 3) * 1024 + (8 * 32 * 49152 if t >= 3 else 0)
                r.append(salu("s_add_u32", sT1, sOoff, off))
                r.append(bstore("buffer_store_dwordx4", V(d, 4), vL16, SRDO, sT1, 0, mods=CFG["pmod"]))
        return r
    o = [comment(f"---- partial output projection {role}")]
    o += [wait(vm=24)] + vreads(vV0, 0, fb[0])
    extra = 0
    for e in range(ne):
        ks, cb = seq[e]
        M = [mfma(acc(cb, nt, t), A(fb[e & 1] + nt * 4, 4), F(ks, t), acc(cb, nt, t) if ks else 0)
             for t in range(nt_) for nt in range(8)]
        O = []
        if e + 4 < ne:
            O += wofill(e % 4, *seq[e + 4])
        if e + 1 < ne:
            younger = 8 * (min(ne, e + 5) - (e + 2))
            O += [wait(vm=younger)] + vreads(vV0, ((e + 1) % 4) * SLOT, fb[(e + 1) & 1])
        o.append(wait(lgkm=0))
        o += merge(M, O)
        if role == "B" and e == 3:
            o += stores(0)
    if role == "A":
        o += stores(0) + stores(1)
    else:
        o += stores(1)
    return pre, o


O_WS_BYTES = 768 * 49152


def set_kv(dk, dv, pk, pv):
    return [salu("s_lshl_b32", sT2, sT2, 18),
            salu("s_lshl_b32", sT1, sW, 13),
            salu("s_add_u32", sT2, sT2, sT1),
            salu("s_add_u32", S(dk), S(pk), sT2),
            salu("s_addc_u32", S(dk + 1), S(pk + 1), 0),
            salu("s_add_u32", S(dv), S(pv), sT2),
            salu("s_addc_u32", S(dv + 1), S(pv + 1), 0)]


def set_w(pwq):
    return [salu("s_lshl_b32", sT2, sH, 8), salu("s_lshl_b32", sT1, sW, 21), salu("s_add_u32", sT2, sT2, sT1),
            salu("s_add_u32", S(40), S(pwq), sT2), salu("s_addc_u32", S(41), S(pwq + 1), 0),
            salu("s_mov_b32", S(42), 255 * 8192 + 512), salu("s_mov_b32", sWoff, 0)]


def set_x(px):
    return [salu("s_lshl_b32", sT1, sW, 9),
            salu("s_add_u32", S(44), S(px), sT1), salu("s_addc_u32", S(45), S(px + 1), 0),
            salu("s_sub_u32", S(46), 16 * 49152, sT1), salu("s_mul_i32", sXb, sB, 49152)]


def qproj(role, D):
    assert D == 4
    fb = (VF, KF)
    nt = 3 if role == "A" else 6
    per = 3 if role == "A" else 2
    def Xreg(par, t): return V(X0 + (par * nt + t) * 4, 4)
    pl = prime_list(D, False)
    seq = []
    for p in range(8):
        seq += [("X", p, 0), ("W", p, 0)] + ([("W", p, 1)] if role == "A" else [])
    Dq = CFG["dq" + role] or per
    base = 4 - Dq
    kfill = []
    for k in range(base):
        kfill += set_site(1, *pl[k]) + refill(1, k)
    pl = pl[base:]
    ne = len(seq)
    kpos = CFG["kpos" + role]
    if kpos < 0:
        kpos = ne + 1 + kpos
    order = []

    def fill(e):
        pre = []
        if e == kpos and base:
            pre = list(kfill)
            if CFG["kwait" + role]:
                pre.append(wait(vm=0))
            order.append(("K", 8 * base))
        slot = base + e % Dq
        if e >= ne:
            order.append((e, 8))
            kind, idx = pl[e - ne]
            return pre + set_site(1, kind, idx) + refill(1, slot)
        k, p, h = seq[e]
        if k == "X":
            order.append((e, nt))
            if p:
                pre += [salu("s_add_u32", sKap, sKap, 1), salu("s_and_b32", sKap, sKap, 7)]
            pre += [salu("s_lshl_b32", sXoff, sKap, 6), salu("s_add_u32", sXoff, sXoff, sXb)]
            return pre + xfill(slot, nt)
        order.append((e, 8))
        pre += [salu("s_lshl_b32", sWoff, sKap, 18)] + ([salu("s_add_u32", sWoff, sWoff, 256)] if h else [])
        return pre + wfill(slot)

    def waitfor(e):
        idx = [x[0] for x in order].index(e)
        return wait(vm=sum(c for _, c in order[idx + 1:]))
    wcount = [0]
    wbuf = {}

    def reads(e):
        slot = base + e % Dq
        k, p, h = seq[e]
        if k == "X":
            return xreads(slot, Xreg, p & 1, nt)
        wbuf[e] = fb[wcount[0] & 1]
        wcount[0] += 1
        return vreads(vV0, slot * SLOT, wbuf[e])
    init = []
    n0 = 2 if CFG["ramp"] else Dq
    for e in range(n0):
        init += fill(e)
    o = [comment(f"---- q projection role {role}")]
    o += [waitfor(0)] + reads(0) + [waitfor(1)] + reads(1)
    pend = []
    for e in range(n0, Dq):
        pend += fill(e)
    pend += [wait(lgkm=0)] + fill(Dq)
    e = 1
    while e < ne:
        if CFG["fine"]:
            o += stamp()
        k, p, h = seq[e]
        assert k == "W"
        M = []
        for t in range(nt):
            at = t + 3 * h
            for dt in range(8):
                M.append(mfma(Oreg(at, dt), A(wbuf[e] + dt * 4, 4), Xreg(p & 1, t), Oreg(at, dt) if p else 0))
        if pend:
            o.append(wait(lgkm=0))
        O = pend + fill(e + Dq)
        pend = []
        if CFG["late"]:
            O.append(After(int(len(M) * CFG["late"])))
        nxt = e + 1
        if nxt < ne and seq[nxt][0] == "X":
            O += [waitfor(nxt)] + reads(nxt) + [waitfor(nxt + 1)] + reads(nxt + 1) + [wait(lgkm=0)] + fill(nxt + Dq)
            nxt += 1
        elif nxt < ne:
            O += [waitfor(nxt)] + reads(nxt) + [wait(lgkm=0)]
        o += merge(M, O)
        e = nxt
    return init, o


def warm(pwq, px):
    if not CFG["touch"]:
        return []
    o = []
    o += [salu("s_lshl_b32", sT2, sI, 1), salu("s_add_u32", sT2, sT2, sW)]
    o += [valu("v_lshlrev_b32", vT1, 7, vLane)]
    o += [salu("s_and_b32", sT0, sT2, 7), salu("s_min_u32", sT0, sT0, 4), salu("s_lshl_b32", sT0, sT0, 13), valu("v_add_u32", vT1, sT0, vT1),
          I(f"global_load_dword v243, {rtxt(vT1)}, s[94:95]", "vm_l", defs=[V(243)], uses=[vT1, S(94, 2)])]
    return o


def acc_move():
    return [valu("v_accvgpr_mov_b32", A(i), A(96 + i)) for i in range(96)]


def attn_kernel(kname):
    DA, DB = CFG["DA"], CFG["DB"]
    o = [label(kname)]
    o += [misc("s_getpc_b64 s[94:95]")]
    o += [scmp("s_cmp_ge_u32", S(2), 512), misc("s_cbranch_scc1 L_attn_end")]
    o += [misc("s_load_dwordx16 s[4:19], s[0:1], 0"), misc("s_load_dwordx8 s[20:27], s[0:1], 64"),
          misc("s_load_dwordx2 s[28:29], s[0:1], 96")]
    o += [valu("v_lshrrev_b32", vT0, 6, V(0)), valu("v_readfirstlane_b32", sW, vT0), valu("v_and_b32", vLane, 63, V(0))]
    o += [salu("s_and_b32", sJ, S(2), 7), salu("s_bfe_u32", sI, S(2), "0x50003")]
    o += [salu("s_mul_i32", sRing, sW, RING)]
    g, q = vU0, vU1
    o += [valu("v_lshrrev_b32", g, 4, vLane), valu("v_and_b32", q, 15, vLane), valu("v_lshlrev_b32", vL16, 4, vLane)]
    o += [salu("s_lshl_b32", sT0, sW, 3), valu("v_xor_b32", vT0, sT0, q), valu("v_lshlrev_b32", vT0, 4, vT0),
          valu("v_lshl_add_u32", vOfsKV, g, 11, vT0),
          valu("v_and_b32", vT1, 1, g), valu("v_lshl_add_u32", vT0, vT1, 17, vT0),
          valu("v_lshrrev_b32", vT1, 1, g), valu("v_lshl_add_u32", vOfsW, vT1, 15, vT0)]
    o += [valu("v_and_b32", vT0, 7, q), valu("v_mul_u32_u24", vT0, BLK, vT0), valu("v_lshrrev_b32", vT1, 3, q),
          valu("v_lshl_add_u32", vT0, vT1, 8, vT0), valu("v_lshl_add_u32", vT0, g, 4, vT0), valu("v_add_u32", vK0, sRing, vT0)]
    o += [valu("v_bfe_u32", vT0, vLane, 2, 3), valu("v_mul_u32_u24", vT0, BLK, vT0), valu("v_lshrrev_b32", vT1, 5, vLane),
          valu("v_lshl_add_u32", vT0, vT1, 8, vT0), valu("v_and_b32", vT1, 3, vLane), valu("v_lshl_add_u32", vT0, vT1, 3, vT0),
          valu("v_add_u32", vV0, sRing, vT0)]
    o += [valu("v_lshrrev_b32", vT0, 2, vLane), valu("v_lshlrev_b32", vT0, 10, vT0), valu("v_and_b32", vT1, 3, vLane),
          valu("v_lshl_add_u32", vX, vT1, 4, vT0),
          valu("v_lshlrev_b32", vT0, 6, q), valu("v_lshl_add_u32", vT0, g, 4, vT0), valu("v_add_u32", vXr, sRing, vT0)]
    o += [valu("v_mul_u32_u24", vT0, QROW, q), valu("v_add_u32", vT0, SCR, vT0), valu("v_lshl_add_u32", vQr, g, 4, vT0),
          valu("v_lshl_add_u32", vT0, g, 3, vT0), salu("s_lshl_b32", sT0, sW, 7), valu("v_add_u32", vQw, sT0, vT0)]
    o += [valu("v_lshlrev_b32", vT0, 3, q), valu("v_add_u32", vSt, STATS, vT0)]
    o += [salu("s_mov_b32", sThr, f32(20.0)), salu("s_mov_b32", sC, f32(128 ** -0.5 * 1.4426950408889634)),
          salu("s_mov_b32", sFlag, 0), salu("s_lshl_b32", sT0, sW, 13), salu("s_sub_u32", sCnum, 262144, sT0)]
    for b in (35, 39, 43, 47, 99):
        o.append(salu("s_mov_b32", S(b), "0x00020000"))
    o.append(wait(lgkm=0))
    o += [salu("s_mov_b32", S(96), S(pWs)), salu("s_mov_b32", S(97), S(pWs + 1)), salu("s_mov_b32", S(98), O_WS_BYTES)]
    o += stamp_init() + stamp(True) + stamp()
    o += [scmp("s_cmp_lt_u32" if CFG["a_first"] else "s_cmp_ge_u32", S(2), 256), misc("s_cbranch_scc1 L_roleA")]

    o += [salu("s_lshl_b32", sH, sJ, 2), salu("s_and_b32", sT0, sI, 3), salu("s_add_u32", sH, sH, sT0),
          salu("s_lshr_b32", sB, sI, 2), salu("s_lshl_b32", sT0, sT0, 1), salu("s_add_u32", sKap, sB, sT0),
          salu("s_and_b32", sKap, sKap, 7 if CFG["rot"] else 0)]
    if CFG["prioA"] == 2:
        o.append(misc("s_setprio 3"))
    o += warm(pBwq, pBx) + (stamp() if CFG["fine"] else [])
    o += set_w(pBwq) + set_x(pBx)
    qi, qp = qproj("B", DB)
    o += [salu("s_lshl_b32", sT2, sB, 5), salu("s_add_u32", sT2, sT2, sH)] + set_kv(sKb, sVb, pBk, pBv)
    o += qi
    o += [salu("s_add_u32", S(sKn), S(sKb), 8 * 32 * 262144), salu("s_addc_u32", S(sKn + 1), S(sKb + 1), 0),
          salu("s_add_u32", S(sVn), S(sVb), 8 * 32 * 262144), salu("s_addc_u32", S(sVn + 1), S(sVb + 1), 0),
          salu("s_mov_b32", sNnum, sCnum)]
    o += stamp()
    o += qp + stamp()
    if CFG["prioA"] == 2:
        o.append(misc("s_setprio 0"))
    o += [salu("s_lshl_b32", sT2, sB, 5), salu("s_add_u32", sT2, sT2, sH), salu("s_lshl_b32", sT2, sT2, 1),
          salu("s_add_u32", sT2, sT2, sW), salu("s_mul_i32", sOoff, sT2, 24576), salu("s_add_u32", sOoff, sOoff, PB_B),
          salu("s_mov_b32", sJob, 0)]
    o.append(label("L_jobB"))
    o.append(call(RA1, "L_qfin"))
    o += qfrag_reads(Qreg)
    o += stamp_once()
    o += job_body(3, DB, "B") + stamp()
    pre, body = opart("B")
    o += [scmp("s_cmp_lg_u32", sJob, 0), misc("s_cbranch_scc1 L_lastB")]
    o.append(call(RA1, "L_ofin"))
    o += acc_move()
    o += ofrag_reads(lambda ks, qt: A(96 + (ks * 3 + qt) * 4, 4)) + stamp()
    o += [salu("s_mov_b32", sJob, 1),
          salu("s_mov_b32", S(sKb), S(sKn)), salu("s_mov_b32", S(sKb + 1), S(sKn + 1)),
          salu("s_mov_b32", S(sVb), S(sVn)), salu("s_mov_b32", S(sVb + 1), S(sVn + 1)), salu("s_mov_b32", sNnum, 0)]
    o.append(misc("s_branch L_jobB"))
    o.append(label("L_lastB"))
    o += wo_setup(pBwo) + pre
    o.append(call(RA1, "L_ofin"))
    o += ofrag_reads(lambda ks, qt: V(FA + (ks * 3 + qt) * 4, 4))
    for i in range(48):
        o.append(valu("v_accvgpr_read_b32", V(FB + i), A(96 + i)))
    o += body + stamp()
    o.append(misc("s_branch L_attn_done"))

    o.append(label("L_roleA"))
    if CFG["prioA"] == 1:
        o.append(misc("s_setprio 2"))
    o += [salu("s_lshl_b32", sH, sJ, 2), salu("s_and_b32", sT0, sI, 1), salu("s_lshl_b32", sT0, sT0, 1),
          salu("s_add_u32", sH, sH, sT0), salu("s_lshr_b32", sB, sI, 1), salu("s_lshl_b32", sT0, sT0, 1),
          salu("s_add_u32", sKap, sB, sT0), salu("s_and_b32", sKap, sKap, 7 if CFG["rot"] else 0)]
    o += warm(pAwq, pAx) + (stamp() if CFG["fine"] else [])
    o += set_w(pAwq) + set_x(pAx)
    qi, qp = qproj("A", DA)
    o += [salu("s_lshl_b32", sT2, sB, 3), salu("s_add_u32", sT2, sT2, sJ)] + set_kv(sKb, sVb, pAk, pAv)
    o += qi
    o += [salu("s_mov_b32", S(sKn), S(sKb)), salu("s_mov_b32", S(sKn + 1), S(sKb + 1)),
          salu("s_mov_b32", S(sVn), S(sVb)), salu("s_mov_b32", S(sVn + 1), S(sVb + 1)), salu("s_mov_b32", sNnum, 0)]
    o += stamp()
    o += qp + stamp()
    if CFG["prioA"] == 2:
        o.append(misc("s_setprio 2"))
    o.append(call(RA1, "L_qfin"))
    o += qfrag_reads(Qreg)
    o += acc_move()
    o.append(call(RA1, "L_qfin"))
    o += qfrag_reads(lambda qt, ks: Qreg(3 + qt, ks))
    o += [salu("s_lshl_b32", sT2, sB, 5), salu("s_add_u32", sT2, sT2, sH), salu("s_add_u32", sT2, sT2, sW),
          salu("s_mul_i32", sOoff, sT2, 24576)]
    o += stamp()
    o += job_body(6, DA, "A") + stamp()
    pre, body = opart("A")
    o += wo_setup(pAwo) + pre
    o.append(call(RA1, "L_ofin"))
    o += ofrag_reads(lambda ks, qt: V(FA + (ks * 3 + qt) * 4, 4))
    o += acc_move()
    for qt in range(3):
        o += [valu("v_mov_b32", V(NM0 + qt * 4), V(NM0 + (qt + 3) * 4)), valu("v_mov_b32", V(L0 + qt * 4), V(L0 + (qt + 3) * 4))]
    o.append(call(RA1, "L_ofin"))
    o += ofrag_reads(lambda ks, qt: V(FB + (ks * 3 + qt) * 4, 4)) + stamp()
    o += body
    o += stamp() + stamp()
    o.append(label("L_attn_done"))
    o += stamp(True)
    o.append(label("L_attn_end"))
    o.append(misc("s_endpgm"))
    o += sub_qfin() + sub_combine() + sub_ofin() + sub_rare1(6) + sub_rare1(3) + sub_rare2(6) + sub_rare2(3)
    return o


def reduce_kernel(kname):
    o = [label(kname)]
    o += [scmp("s_cmp_ge_u32", S(2), 384), misc("s_cbranch_scc1 L_rd_end")]
    o += [misc("s_load_dwordx2 s[24:25], s[0:1], 80"), misc("s_load_dwordx2 s[28:29], s[0:1], 96")]
    vT0, vL16, vOut = V(1), V(2), V(3)
    sU, sBb, sR, sIsA = S(80), S(81), S(82), S(83)
    o += [valu("v_lshrrev_b32", vT0, 6, V(0)), valu("v_readfirstlane_b32", sW, vT0), valu("v_and_b32", V(0), 63, V(0))]
    o += [salu("s_lshl_b32", sU, S(2), 2), salu("s_add_u32", sU, sU, sW), valu("v_lshlrev_b32", vL16, 4, V(0)),
          valu("v_and_b32", vT0, 15, V(0)), valu("v_lshlrev_b32", vOut, 11, vT0), valu("v_lshrrev_b32", vT0, 4, V(0)),
          valu("v_lshl_add_u32", vOut, vT0, 3, vOut)]
    o += [scmp("s_cmp_ge_u32", sU, 768), salu("s_cselect_b32", sIsA, 1, 0), salu("s_cselect_b32", sT0, 768, 0),
          salu("s_sub_u32", sU, sU, sT0), salu("s_mul_i32", sT0, sU, 1366), salu("s_lshr_b32", sBb, sT0, 16),
          salu("s_mul_i32", sT0, sBb, 48), salu("s_sub_u32", sR, sU, sT0)]
    o += [salu("s_mov_b32", S(35), "0x00020000"), salu("s_mov_b32", S(39), "0x00020000")]
    o += [salu("s_lshl_b32", sT0, sBb, 5), salu("s_add_u32", sT0, sT0, 256), salu("s_lshl_b32", sT1, sBb, 4),
          salu("s_mov_b32", sT2, 31 * 49152 + 1024),
          scmp("s_cmp_eq_u32", sIsA, 1), salu("s_cselect_b32", sT0, sT1, sT0), salu("s_cselect_b32", sT2, 15 * 49152 + 1024, sT2),
          salu("s_mul_i32", sT0, sT0, 49152), salu("s_lshl_b32", sT1, sR, 10), salu("s_add_u32", sT0, sT0, sT1), wait(lgkm=0),
          salu("s_add_u32", S(32), S(28), sT0), salu("s_addc_u32", S(33), S(29), 0), salu("s_mov_b32", S(34), sT2)]
    o += [salu("s_mov_b32", S(36), S(24)), salu("s_mov_b32", S(37), S(25)), salu("s_mov_b32", S(38), 16 * 48 * 2048)]
    o.append(salu("s_mov_b32", sT0, 0))
    for j in range(32):
        if j:
            o.append(salu("s_add_u32", sT0, sT0, 49152))
        o.append(bload("buffer_load_dwordx4", V(16 + j * 4, 4), vL16, S(32, 4), sT0, 0, mods=CFG["rmod"]))
    o += [salu("s_mul_i32", sT1, sR, 21846), salu("s_lshr_b32", sT1, sT1, 16),
          salu("s_mul_i32", sT2, sT1, 3), salu("s_sub_u32", sT2, sR, sT2),
          salu("s_mul_i32", sT0, sBb, 48 * 2048), salu("s_lshl_b32", sT2, sT2, 15), salu("s_add_u32", sT0, sT0, sT2),
          salu("s_lshl_b32", sT1, sT1, 6), salu("s_add_u32", sT0, sT0, sT1),
          salu("s_xor_b32", sT1, sIsA, 1), salu("s_lshl_b32", sT1, sT1, 10), salu("s_add_u32", sT0, sT0, sT1),
          salu("s_mov_b32", sT2, "0xffff0000")]
    for k in range(8):
        o.append(valu("v_mov_b32", V(8 + k), 0))
    for j in range(32):
        if j % 4 == 0:
            o.append(wait(vm=28 - j))
        for k in range(4):
            x = V(16 + j * 4 + k)
            o += [valu("v_lshlrev_b32", V(4), 16, x), valu("v_and_b32", V(5), sT2, x),
                  valu("v_add_f32", V(8 + 2 * k), V(8 + 2 * k), V(4)), valu("v_add_f32", V(9 + 2 * k), V(9 + 2 * k), V(5))]
    for h in range(2):
        a = 8 + 4 * h
        o += [valu("v_cvt_pk_bf16_f32", V(a), V(a), V(a + 1)), valu("v_cvt_pk_bf16_f32", V(a + 1), V(a + 2), V(a + 3))]
        o.append(bstore("buffer_store_dwordx2", V(a, 2), vOut, S(36, 4), sT0, h * 32))
    o.append(label("L_rd_end"))
    o.append(misc("s_endpgm"))
    return o


def kd(name, nv, acc):
    return f""".p2align 6
.amdhsa_kernel {name}
  .amdhsa_next_free_vgpr {nv}
  .amdhsa_next_free_sgpr 102
  .amdhsa_accum_offset {acc}
  .amdhsa_group_segment_fixed_size 0
  .amdhsa_kernarg_size 104
  .amdhsa_user_sgpr_count 2
  .amdhsa_user_sgpr_kernarg_segment_ptr 1
  .amdhsa_system_sgpr_workgroup_id_x 1
.end_amdhsa_kernel
"""


def finish(ins):
    ins, _ = pad(ins)
    pr = check_all_edges(ins)
    for p in pr:
        print("EDGE HAZARD:", p, file=sys.stderr)
    return render(ins)


def build(path, only=None, **cfg):
    CFG.update(cfg)
    _uid[0] = 0
    k1 = NAME + "_kernel"
    k3 = "reduce_kernel"
    hdr = open("cdna_kernels/" + NAME + ".s.ref").read().split("; Override launch")[0]
    t = hdr
    if only in (None, "attn"):
        t += f"; @launch kernel={k1} grid=(512,1,1) block=(128,1,1) lds={LDS_BYTES}\n"
    if only in (None, "rd"):
        t += f"; @launch kernel={k3} grid=(384,1,1) block=(256,1,1) lds=0\n"
    t += '.amdgcn_target "amdgcn-amd-amdhsa--gfx950"\n.text\n'
    for k, gen in ((k1, attn_kernel), (k3, reduce_kernel)):
        t += f".globl {k}\n.p2align 8\n.type {k},@function\n"
        t += finish(gen(k))
    t += '.section .rodata,"a"\n'
    t += kd(k1, 512, 256) + kd(k3, 144, 144)
    open(path, "w").write(t)


if __name__ == "__main__":
    build(sys.argv[1] if len(sys.argv) > 1 else "cdna_kernels/" + NAME + ".s")
```

```python
import gen4
base = dict(rot=True, touch=True, kwaitA=False, prioA=1, stamp=False, fine=False, kposA=-1, kposB=-1, dqA=4, dqB=4, late=0, thr=0, ramp=False, pmod="", rmod="")
gen4.build("v4.s", **base)
gen4.build("v4_at.s", only="attn", **base)
gen4.build("v4_rd.s", only="rd", **base)
gen4.build("v4_nt.s", **{**base, **dict(pmod="nt", rmod="nt")})
gen4.build("v4_nt2.s", **{**base, **dict(pmod="nt", rmod="")})
gen4.build("v4_nt3.s", **{**base, **dict(pmod="", rmod="nt")})
gen4.build("v4_st.s", only="attn", **{**base, **dict(stamp=True)})
```
